```python
import torch

def _softmax(x, axis=-1):
    return torch.softmax(x, dim=axis)

def _gelu(x):
    return torch.nn.functional.gelu(x, approximate='tanh')

def _silu(x):
    return torch.nn.functional.silu(x)

def _sigmoid(x):
    return torch.sigmoid(x)

def _layernorm(x, axis=-1, eps=1e-05):
    m = x.mean(dim=axis, keepdim=True)
    v = x.var(dim=axis, keepdim=True, unbiased=False)
    return (x - m) / torch.sqrt(v + eps)

def _scatter_add(tgt, idx, src, axis=0):
    return tgt.clone().index_add_(axis, idx, src)

def _segment_sum(src, seg, n):
    out = torch.zeros((n,) + src.shape[1:], dtype=src.dtype)
    return out.index_add_(0, seg, src)

def _pad(x, pw):
    flat = tuple((v for pair in reversed(pw) for v in pair))
    return torch.nn.functional.pad(x, flat)
kernel_name = 'adaLN_cond__gqa_block_cached__swiglu_ffn__prompt'

def setup_inputs():

    _w = lambda a: (lambda t: t.to(torch.bfloat16) if t.is_floating_point() else t)(torch.as_tensor(a))

    def _A_setup():
        B, Sq, D = (1, 2048, 448)
        Hq, Hkv, Sk, Dh = (16, 8, 2048, 256)
        assert Hq % Hkv == 0, (Hq, Hkv)
        return {'x': _w((lambda *s: torch.randn(*s, dtype=torch.bfloat16) * 0.05)(B, Sq, D)), 'k_cache': _w((lambda *s: torch.randn(*s, dtype=torch.bfloat16) * 3.2)(B, Hkv, Sk, Dh)), 'v_cache': _w((lambda *s: torch.randn(*s, dtype=torch.bfloat16) * 0.4)(B, Hkv, Sk, Dh)), 'wq': _w((lambda *s: torch.randn(*s, dtype=torch.bfloat16) * 3.2)(D, Hq * Dh) * D ** (-0.5)), 'wo': _w((lambda *s: torch.randn(*s, dtype=torch.bfloat16) * 0.4)(Hq * Dh, D) * (Hq * Dh) ** (-0.5))}
    _A_in = _A_setup()

    def _B_setup():
        B, S, D, F = (1, 2048, 448, 1792)
        return {'x': _w((lambda *s: torch.randn(*s, dtype=torch.bfloat16) * 0.05)(B, S, D)), 'w_gate': _w((lambda *s: torch.randn(*s, dtype=torch.bfloat16) * 0.05)(D, F)), 'w_up': _w((lambda *s: torch.randn(*s, dtype=torch.bfloat16) * 0.05)(D, F)), 'w_down': _w((lambda *s: torch.randn(*s, dtype=torch.bfloat16) * 0.05)(F, D))}
    _B_in = _B_setup()
    return {'A_x': _A_in['x'], 'A_k_cache': _A_in['k_cache'], 'A_v_cache': _A_in['v_cache'], 'A_wq': _A_in['wq'], 'A_wo': _A_in['wo'], 'B_x': _B_in['x'], 'B_w_gate': _B_in['w_gate'], 'B_w_up': _B_in['w_up'], 'B_w_down': _B_in['w_down'], 'c': _w((lambda *s: torch.randn(*s, dtype=torch.bfloat16) * 0.2)(1, 448) * 8.0), 'w_mod': _w((lambda *s: torch.randn(*s, dtype=torch.bfloat16) * 0.2)(448, 6 * 448) * 448 ** (-0.5) * 8.0)}

def reference(A_x, A_k_cache, A_v_cache, A_wq, A_wo, B_x, B_w_gate, B_w_up, B_w_down, c, w_mod):

    def _A_ref(x, k_cache, v_cache, wq, wo):
        B, Sq, D = x.shape
        Hq, Dh = (16, 256)
        Hkv = k_cache.shape[1]
        rep = Hq // Hkv
        q = (lambda x, *d: x.permute(*d))((x @ wq).reshape(B, Sq, Hq, Dh), 0, 2, 1, 3)
        k = (lambda x, n, axis: torch.repeat_interleave(x, n, dim=axis))(k_cache, rep, axis=1)
        v = (lambda x, n, axis: torch.repeat_interleave(x, n, dim=axis))(v_cache, rep, axis=1)
        scores = torch.einsum('bhqd,bhkd->bhqk', q, k) * Dh ** (-0.5)
        p = _softmax(scores, axis=-1)
        o = torch.einsum('bhqk,bhkd->bhqd', p, v)
        return (lambda x, *d: x.permute(*d))(o, 0, 2, 1, 3).reshape(B, Sq, Hq * Dh) @ wo

    def _B_ref(x, w_gate, w_up, w_down):
        g = _silu(x @ w_gate)
        u = x @ w_up
        return g * u @ w_down
    x = A_x
    mod = (_silu(c) @ w_mod).reshape(c.shape[0], 6, 1, -1)
    sa, ca, ga, sb, cb, gb = (mod[:, 0].clone(), mod[:, 1].clone(), mod[:, 2].clone(), mod[:, 3].clone(), mod[:, 4].clone(), mod[:, 5].clone())
    h = _layernorm(x, axis=-1) * (1 + ca) + sa
    x = x + ga * _A_ref(h, A_k_cache, A_v_cache, A_wq, A_wo)
    h = _layernorm(x, axis=-1) * (1 + cb) + sb
    x = x + gb * _B_ref(h, B_w_gate, B_w_up, B_w_down)
    return x
```

```python
import re

_REG = re.compile(r"\b([vas])\[(\d+):(\d+)\]|\b([vas])(\d+)\b")


def regs_of(op):
    out = []
    for m in _REG.finditer(op):
        if m.group(1):
            out += [f"{m.group(1)}{i}" for i in range(int(m.group(2)), int(m.group(3)) + 1)]
        else:
            out.append(f"{m.group(4)}{m.group(5)}")
    return out


TRANS = ("v_exp_f32", "v_rcp_f32", "v_rsq_f32", "v_sqrt_f32", "v_log_f32")


class Ins:
    __slots__ = ("text", "op", "kind", "wr", "rd", "states")

    def __init__(self, text):
        self.text = text
        t = text.split(";")[0].strip()
        parts = t.split(None, 1)
        self.op = parts[0]
        ops = [o.strip() for o in parts[1].split(",")] if len(parts) > 1 else []
        self.states = 1
        op = self.op
        self.wr, self.rd = [], []
        if op == "s_nop":
            self.kind = "nop"
            self.states = int(ops[0], 0) + 1
        elif op.startswith("v_mfma"):
            self.kind = "mfma"
            self.wr = regs_of(ops[0])
            self.rd = [regs_of(o) for o in ops[1:4]]
        elif op.startswith("v_permlane"):
            self.kind = "perm"
            self.wr = regs_of(ops[0]) + regs_of(ops[1])
            self.rd = self.wr
        elif op.startswith("v_"):
            self.kind = "trans" if op in TRANS else "valu"
            if op.startswith("v_cmp"):
                self.wr = regs_of(ops[0]) if not ops[0].startswith("vcc") else ["vcc"]
                self.rd = sum((regs_of(o) for o in ops[1:]), [])
            else:
                self.wr = regs_of(ops[0])
                self.rd = sum((regs_of(o) for o in ops[1:]), [])
                if op.startswith("v_fmac") or op.startswith("v_dot2c"):
                    self.rd += self.wr
        elif op.startswith("ds_read"):
            self.kind = "lds"
            self.wr = regs_of(ops[0])
            self.rd = regs_of(ops[1].split()[0])
        elif op.startswith("ds_write"):
            self.kind = "lds"
            self.rd = sum((regs_of(o.split()[0]) for o in ops), [])
        elif op.startswith("buffer_load"):
            self.kind = "vmem"
            if " lds" in t:
                self.rd = sum((regs_of(o.split()[0]) for o in ops), [])
            else:
                self.wr = regs_of(ops[0])
                self.rd = sum((regs_of(o.split()[0]) for o in ops[1:]), [])
        elif op.startswith("buffer_store"):
            self.kind = "vmem"
            self.rd = sum((regs_of(o.split()[0]) for o in ops), [])
        else:
            self.kind = "other"


class Builder:
    def __init__(self):
        self.items = []
        self.lds_seq = 0
        self.lds_done = 0
        self.tags = {}

    def I(self, text):
        ins = Ins(text)
        self.items.append(ins)
        return ins

    def raw(self, text):
        self.items.append(text)

    def L(self, name):
        self.items.append(name + ":")

    def lds(self, text, tag=None):
        self.I(text)
        self.lds_seq += 1
        if tag is not None:
            self.tags[tag] = self.lds_seq

    def need(self, tags):
        hi = max(self.tags[t] for t in tags)
        if hi <= self.lds_done:
            return
        n = self.lds_seq - hi
        assert n <= 15, n
        self.I(f"s_waitcnt lgkmcnt({n})")
        self.lds_done = hi

    def lds_drain(self):
        self.I("s_waitcnt lgkmcnt(0)")
        self.lds_done = self.lds_seq

    def text(self):
        out = []
        for it in self.items:
            out.append(it if isinstance(it, str) else "    " + it.text)
        return "\n".join(out) + "\n"

    def check(self, name=""):
        ins = [i for i in self.items if not isinstance(i, str)]
        errs = []
        for p, cur in enumerate(ins):
            dist = 0
            q = p - 1
            while q >= 0 and dist < 20:
                prev = ins[q]
                if cur.kind == "mfma":
                    allrd = set(sum(cur.rd, []))
                    if prev.kind in ("valu", "trans", "perm") and dist < 2 and allrd & set(prev.wr):
                        errs.append((p, "VALU->MFMA", prev.text, cur.text))
                    if prev.kind == "mfma":
                        if dist < 12 and set(cur.rd[0] + cur.rd[1]) & set(prev.wr):
                            errs.append((p, "MFMA->MFMA A/B", prev.text, cur.text))
                        c = cur.rd[2]
                        if c and set(c) & set(prev.wr) and c != prev.wr and dist < 10:
                            errs.append((p, "MFMA->MFMA C overlap", prev.text, cur.text))
                elif cur.kind in ("valu", "trans", "perm", "lds", "vmem"):
                    if prev.kind == "mfma" and dist < 12 and (set(cur.rd) | set(cur.wr)) & set(prev.wr):
                        errs.append((p, "MFMA->use", prev.text, cur.text))
                    if prev.kind == "mfma" and cur.kind in ("valu", "trans", "perm") and dist < 7 \
                            and set(cur.wr) & set(prev.rd[2]):
                        errs.append((p, "MFMA C WAR", prev.text, cur.text))
                    if prev.kind == "trans" and cur.kind in ("valu", "perm") and dist < 1 and set(cur.rd) & set(prev.wr):
                        errs.append((p, "trans->VALU", prev.text, cur.text))
                    if cur.kind == "perm" and prev.kind in ("valu", "trans") and dist < 2 and set(cur.rd) & set(prev.wr):
                        errs.append((p, "VALU->permlane", prev.text, cur.text))
                    if prev.kind in ("valu",) and prev.op.startswith(("v_readfirstlane", "v_readlane")):
                        if cur.kind == "vmem" and dist < 5 and set(cur.rd) & set(prev.wr):
                            errs.append((p, "VALU sgpr->VMEM", prev.text, cur.text))
                        if cur.kind in ("valu", "trans") and dist < 2 and set(cur.rd) & set(prev.wr):
                            errs.append((p, "VALU sgpr->VALU", prev.text, cur.text))
                    if cur.op.startswith(("v_readfirstlane", "v_readlane")) and prev.kind in ("valu", "trans") \
                            and dist < 1 and set(cur.rd) & set(prev.wr):
                        errs.append((p, "VALU->readlane", prev.text, cur.text))
                    if prev.op.startswith("buffer_store_dwordx4") and cur.kind in ("valu", "trans", "perm") and dist < 2 \
                            and set(cur.wr) & set(prev.rd):
                        errs.append((p, "store WAR", prev.text, cur.text))
                    if prev.op.startswith("v_dot2") and cur.kind in ("valu", "trans", "perm") and dist < 3 \
                            and not cur.op.startswith("v_dot2") and (set(cur.rd) | set(cur.wr)) & set(prev.wr):
                        errs.append((p, "dot->VALU", prev.text, cur.text))
                dist += prev.states
                q -= 1
        for e in errs[:20]:
            print("HAZARD", name, e)
        return len(errs)
```

```python
import struct
import sys
import os

sys.path.insert(0, os.path.dirname(__file__))
from asmlib import Builder

WS_MOD = 0
WS_O = 0x100000
WS_X1 = 0x1200000
WS_ACT = 0x1400000
SZ_X = 2048 * 448 * 2
SZ_O = 2048 * 4096 * 2
SZ_ACT = 2048 * 1792 * 2
SZ_MOD = 2688 * 4


def f32(x):
    return "0x%08x" % struct.unpack("<I", struct.pack("<f", x))[0]


LOG2E = 1.4426950408889634
CSCALE = LOG2E / 16.0


def srd(b, d, lo, size, off=0):
    if off:
        b.I(f"s_add_u32 s{d}, s{lo}, {off}")
        b.I(f"s_addc_u32 s{d+1}, s{lo+1}, 0")
    else:
        b.I(f"s_mov_b32 s{d}, s{lo}")
        b.I(f"s_mov_b32 s{d+1}, s{lo+1}")
    b.I(f"s_mov_b32 s{d+2}, {size}")
    b.I(f"s_mov_b32 s{d+3}, 0x00020000")


def kernel_head(b, name):
    b.raw(".text")
    b.raw(f".globl {name}")
    b.raw(".p2align 8")
    b.raw(f".type {name},@function")
    b.L(name)


def kernel_desc(name, vgpr, accum, sgpr=102):
    return f""".section .rodata,"a"
.p2align 6
.amdhsa_kernel {name}
  .amdhsa_next_free_vgpr {vgpr}
  .amdhsa_next_free_sgpr {sgpr}
  .amdhsa_accum_offset {accum}
  .amdhsa_group_segment_fixed_size 0
  .amdhsa_kernarg_size 112
  .amdhsa_user_sgpr_count 2
  .amdhsa_user_sgpr_kernarg_segment_ptr 1
  .amdhsa_system_sgpr_workgroup_id_x 1
.end_amdhsa_kernel
"""


def gen_mod():
    b = Builder()
    name = "mod_kernel"
    kernel_head(b, name)
    b.I("s_cmp_ge_u32 s2, 84")
    b.I("s_cbranch_scc1 MOD_END")
    b.I("s_load_dwordx4 s[4:7], s[0:1], 72")
    b.I("s_load_dwordx2 s[8:9], s[0:1], 104")
    b.I("v_and_b32 v1, 3, v0")
    b.I("v_lshrrev_b32 v2, 2, v0")
    b.I("v_mul_u32_u24 v3, 7, v2")
    b.I("v_lshlrev_b32 v4, 1, v3")
    b.I("s_movk_i32 s30, 5376")
    b.I("v_mul_lo_u32 v5, v3, s30")
    b.I("v_lshl_add_u32 v5, v1, 4, v5")
    b.I("s_lshl_b32 s31, s2, 6")
    b.I("v_add_u32 v5, s31, v5")
    b.I("s_waitcnt lgkmcnt(0)")
    srd(b, 12, 4, 896)
    srd(b, 16, 6, 448 * 2688 * 2)
    srd(b, 20, 8, SZ_MOD, WS_MOD)
    for i in range(7):
        b.I(f"buffer_load_ushort v{10+i}, v4, s[12:15], 0 offen offset:{2*i}")
    for i in range(7):
        b.I(f"s_mov_b32 s{32+i}, {i*5376}")
        b.I(f"buffer_load_dwordx4 v[{20+4*i}:{23+4*i}], v5, s[16:19], s{32+i} offen")
    for j in range(8):
        b.I(f"v_mov_b32 v{50+j}, 0")
    b.I("s_waitcnt vmcnt(7)")
    b.I(f"s_mov_b32 s40, {f32(-LOG2E)}")
    for i in range(7):
        b.I(f"v_lshlrev_b32 v{10+i}, 16, v{10+i}")
        b.I(f"v_mul_f32 v60, s40, v{10+i}")
        b.I("v_exp_f32 v60, v60")
        b.I("s_nop 0")
        b.I("v_add_f32 v60, 1.0, v60")
        b.I("v_rcp_f32 v60, v60")
        b.I("s_nop 0")
        b.I(f"v_mul_f32 v60, v{10+i}, v60")
        b.I(f"v_cvt_pk_bf16_f32 v{10+i}, 0, v60")
    b.I("s_waitcnt vmcnt(0)")
    for i in range(7):
        for q in range(4):
            b.I(f"v_lshlrev_b32 v61, 16, v{20+4*i+q}")
            b.I(f"v_and_b32 v62, 0xffff0000, v{20+4*i+q}")
            b.I(f"v_fmac_f32 v{50+2*q}, v{10+i}, v61")
            b.I(f"v_fmac_f32 v{51+2*q}, v{10+i}, v62")
    b.I("v_lshlrev_b32 v6, 7, v2")
    b.I("v_lshl_add_u32 v6, v1, 5, v6")
    b.I("ds_write_b128 v6, v[50:53]")
    b.I("ds_write_b128 v6, v[54:57] offset:16")
    b.I("s_waitcnt lgkmcnt(0)")
    b.I("s_barrier")
    b.I("v_and_b32 v7, 31, v0")
    b.I("v_lshrrev_b32 v8, 5, v0")
    b.I("v_lshlrev_b32 v9, 10, v8")
    b.I("v_lshl_add_u32 v9, v7, 2, v9")
    for i in range(8):
        b.I(f"ds_read_b32 v{20+i}, v9 offset:{128*i}")
    b.I("s_waitcnt lgkmcnt(0)")
    for i in range(1, 8):
        b.I(f"v_add_f32 v20, v20, v{20+i}")
    b.I("v_lshlrev_b32 v9, 2, v0")
    b.I("ds_write_b32 v9, v20 offset:8192")
    b.I("s_waitcnt lgkmcnt(0)")
    b.I("s_barrier")
    b.I("v_cmp_gt_u32 vcc, 32, v0")
    b.I("s_and_saveexec_b64 s[44:45], vcc")
    b.I("s_cbranch_execz MOD_END")
    for i in range(8):
        b.I(f"ds_read_b32 v{20+i}, v9 offset:{8192+128*i}")
    b.I("s_waitcnt lgkmcnt(0)")
    for i in range(1, 8):
        b.I(f"v_add_f32 v20, v20, v{20+i}")
    b.I("v_cvt_pk_bf16_f32 v20, 0, v20")
    b.I("s_sub_u32 s46, s2, 14")
    b.I("s_cmp_lt_u32 s46, 14")
    b.I("s_cbranch_scc1 MOD_ONE")
    b.I("s_sub_u32 s46, s2, 56")
    b.I("s_cmp_lt_u32 s46, 14")
    b.I("s_cbranch_scc0 MOD_ST")
    b.L("MOD_ONE")
    b.I("v_add_f32 v20, 1.0, v20")
    b.I("v_cvt_pk_bf16_f32 v20, 0, v20")
    b.L("MOD_ST")
    b.I("s_lshl_b32 s31, s2, 7")
    b.I("buffer_store_dword v20, v9, s[20:23], s31 offen")
    b.I("s_waitcnt vmcnt(0)")
    b.L("MOD_END")
    b.I("s_endpgm")
    b.check(name)
    return b.text() + kernel_desc(name, 64, 64)


def ln_gemm(b, rowstride, seg_scale, seg_shift, ldsbase, extra_after_dma=None):
    for s in range(28):
        b.I(f"buffer_load_dwordx4 v[{128+4*s}:{131+4*s}], v244, s[4:7], 0 offen offset:{32*s}")
    b.I("v_lshrrev_b32 v0, 4, v240")
    b.I("v_and_b32 v1, 15, v240")
    b.I("v_lshlrev_b32 v2, 2, v0")
    b.I("v_xor_b32 v1, v1, v2")
    b.I("v_lshlrev_b32 v1, 4, v1")
    b.I(f"s_mov_b32 s30, {rowstride}")
    b.I("v_mul_lo_u32 v245, v0, s30")
    b.I("v_add_u32 v245, v245, v1")
    b.I("s_lshr_b32 s31, s28, 1")
    b.I("s_lshl_b32 s31, s31, 14")
    b.I("s_and_b32 s32, s28, 1")
    b.I("s_lshl_b32 s32, s32, 13")
    b.I("s_add_u32 s31, s31, s32")
    b.I(f"s_add_u32 s31, s31, {ldsbase}")

    def dma_chunk(c):
        for i in range(8):
            b.I(f"s_add_u32 m0, s31, {(c & 1) * 32768 + i * 1024}")
            b.I(f"s_add_u32 s33, s29, {(c * 64 + 4 * i) * rowstride}")
            b.I("buffer_load_dwordx4 v245, s[8:11], s33 offen lds")

    dma_chunk(0)
    dma_chunk(1)
    b.I("v_lshrrev_b32 v0, 4, v240")
    b.I("v_and_b32 v1, 15, v240")
    b.I("v_lshrrev_b32 v2, 2, v1")
    b.I("v_lshrrev_b32 v3, 1, v0")
    b.I("v_lshl_add_u32 v3, v3, 3, v2")
    b.I("v_lshlrev_b32 v3, 8, v3")
    b.I("v_and_b32 v4, 1, v0")
    b.I("v_lshl_add_u32 v3, v4, 5, v3")
    b.I("v_and_b32 v4, 3, v1")
    b.I("v_lshl_add_u32 v3, v4, 3, v3")
    b.I(f"v_add_u32 v3, {ldsbase}, v3")
    for nb in range(4):
        b.I(f"v_xor_b32 v4, {nb}, v2")
        b.I(f"v_lshl_add_u32 v{246+nb}, v4, 6, v3")
    b.I("v_lshlrev_b32 v250, 5, v242")
    b.I(f"s_mov_b32 s34, {seg_scale * 1792}")
    b.I(f"s_mov_b32 s35, {seg_shift * 1792}")
    b.I("s_mov_b32 s36, 0x3f803f80")
    b.I("v_mov_b32 v8, s36")
    for r in range(4):
        b.I(f"v_mov_b32 v{r}, 0")
    b.I("s_waitcnt vmcnt(16)")
    for r in range(112):
        b.I(f"v_dot2_f32_bf16 v{r&1}, v{128+r}, v8, v{r&1}")
        b.I(f"v_dot2_f32_bf16 v{2+(r&1)}, v{128+r}, v{128+r}, v{2+(r&1)}")
    b.I("s_nop 2")
    b.I("v_add_f32 v0, v0, v1")
    b.I("v_add_f32 v2, v2, v3")
    b.I("v_mov_b32 v1, v0")
    b.I("v_mov_b32 v3, v2")
    b.I("s_nop 1")
    b.I("v_permlane32_swap_b32 v0, v1")
    b.I("v_permlane32_swap_b32 v2, v3")
    b.I("v_add_f32 v0, v0, v1")
    b.I("v_add_f32 v2, v2, v3")
    b.I(f"s_mov_b32 s36, {f32(1.0/448.0)}")
    b.I("v_mul_f32 v0, s36, v0")
    b.I("v_mul_f32 v2, s36, v2")
    b.I("v_fma_f32 v2, -v0, v0, v2")
    b.I("v_max_f32 v2, 0, v2")
    b.I("v_cvt_pk_bf16_f32 v0, 0, v0")
    b.I("v_cvt_pk_bf16_f32 v2, 0, v2")
    b.I(f"v_add_f32 v2, {f32(1e-5)}, v2")
    b.I("v_cvt_pk_bf16_f32 v2, 0, v2")
    b.I("v_sqrt_f32 v2, v2")
    b.I("s_nop 0")
    b.I("v_cvt_pk_bf16_f32 v2, 0, v2")
    b.I("v_rcp_f32 v252, v2")
    b.I("s_nop 0")
    b.I("v_mov_b32 v253, v252")
    b.I("v_mul_f32 v254, v0, v252")
    b.I("v_sub_f32 v254, 0, v254")
    b.I("v_mov_b32 v255, v254")
    for bt in range(4):
        for j in range(7):
            s = bt * 7 + j
            for hf in range(2):
                b.I(f"buffer_load_dwordx4 v[{8*j+4*hf}:{8*j+4*hf+3}], v250, s[20:23], s34 offen offset:{64*s+16*hf}")
                b.I(f"buffer_load_dwordx4 v[{56+8*j+4*hf}:{56+8*j+4*hf+3}], v250, s[20:23], s35 offen offset:{64*s+16*hf}")
        b.I("s_waitcnt vmcnt(0)")
        for j in range(7):
            s = bt * 7 + j
            for q in range(4):
                t = 112 + 2 * ((4 * j + q) % 8)
                x = 128 + 4 * s + q
                b.I(f"v_lshlrev_b32 v{t}, 16, v{x}")
                b.I(f"v_and_b32 v{t+1}, 0xffff0000, v{x}")
                b.I(f"v_pk_fma_f32 v[{t}:{t+1}], v[{t}:{t+1}], v[252:253], v[254:255]")
                b.I(f"v_pk_fma_f32 v[{t}:{t+1}], v[{t}:{t+1}], v[{8*j+2*q}:{8*j+2*q+1}], v[{56+8*j+2*q}:{56+8*j+2*q+1}]")
                b.I(f"v_cvt_pk_bf16_f32 v{x}, v{t}, v{t+1}")
    D = 6
    for c in range(7):
        b.I("s_waitcnt vmcnt(0)")
        b.I("s_barrier")
        if 1 <= c < 6:
            dma_chunk(c + 1)
        if c == 6 and extra_after_dma is not None:
            extra_after_dma()
        seq = [(ks, blk) for ks in range(4) for blk in range(8)]

        def rd(n):
            ks, blk = seq[n]
            fr = 64 + 4 * (n % 8)
            for r2 in range(2):
                off = (c & 1) * 32768 + (blk >> 2) * 16384 + (16 * ks + 4 * r2) * 256
                b.lds(f"ds_read_b64_tr_b16 a[{fr+2*r2}:{fr+2*r2+1}], v{246+(blk&3)} offset:{off}", tag=("g", c, n))
        for n in range(min(D, 32)):
            rd(n)
        for n in range(32):
            ks, blk = seq[n]
            if n % 2 == 0:
                b.need([("g", c, m) for m in range(n, min(n + 2, 32))])
            fr = 64 + 4 * (n % 8)
            s = c * 4 + ks
            cc = "0" if s == 0 else f"v[{16*blk}:{16*blk+15}]"
            b.I(f"v_mfma_f32_32x32x16_bf16 v[{16*blk}:{16*blk+15}], a[{fr}:{fr+3}], v[{128+4*s}:{131+4*s}], {cc}")
            if n + D < 32:
                rd(n + D)
    b.I("s_nop 15")


def pack_swap(b, src, dst):
    for q in range(4):
        b.I(f"v_cvt_pk_bf16_f32 v{dst+q}, v{src+2*q}, v{src+2*q+1}")
    b.I("s_nop 1")
    b.I(f"v_permlane32_swap_b32 v{dst}, v{dst+2}")
    b.I(f"v_permlane32_swap_b32 v{dst+1}, v{dst+3}")


VM, VMC, VTHR, VL0, VL1, VTA, VTB = 184, 185, 186, 187, 188, 189, 190
VT0 = 191
VKA, VVA, VKD, VVD = 196, 204, 208, 212
SC = 46
S_KOFF, S_VOFF, S_W4096, S_CNT = 47, 48, 49, 50


def attn_iter(b, u, first=False, do_dma=True):
    D = 8
    Scur = 128 + 16 * (u & 1)
    Snxt = 128 + 16 * ((u + 1) & 1)
    T = 168
    P = 160

    def read_for(i):
        if i < 16:
            slot, s = (u + 1) & 3, i
        elif i >= 32:
            slot, s = (u + 2) & 3, i - 32
        if i < 16 or i >= 32:
            fr = 64 + 4 * (s % 8)
            b.lds(f"ds_read_b128 a[{fr}:{fr+3}], v{VKA+(s&7)} offset:{slot*16384+(s>>3)*256}", tag=("k", s))
        else:
            idx = i - 16
            ks, db = idx >> 3, idx & 7
            fr = 96 + 4 * (idx % 8)
            for r2 in range(2):
                off = u * 16384 + (16 * ks + 8 * r2) * 512 + (db >> 2) * 256
                b.lds(f"ds_read_b64_tr_b16 a[{fr+2*r2}:{fr+2*r2+1}], v{VVA+(db&3)} offset:{off}", tag=("v", idx))

    ex = []
    F = lambda e: (f"v_fma_f32 v{T+e}, v{Scur+e}, s{SC}, -v{VMC}", 4)
    X = lambda e: (f"v_exp_f32 v{T+e}, v{T+e}", 8)
    A = lambda e: (f"v_add_f32 v{VL0+(e&1)}, v{VL0+(e&1)}, v{T+e}", 4)
    C = lambda p: (f"v_cvt_pk_bf16_f32 v{P+p}, v{T+2*p}, v{T+2*p+1}", 4)
    ex += [F(0), F(1), X(0), X(1)]
    for p in range(8):
        e = 2 * p
        if p < 7:
            ex += [F(e + 2), F(e + 3), X(e + 2), A(e), X(e + 3), A(e + 1), C(p)]
        else:
            ex += [A(e), A(e + 1), C(p)]
    mx = [
        (f"v_max3_f32 v{VT0}, v{Snxt}, v{Snxt+1}, v{Snxt+2}", 4),
        (f"v_max3_f32 v{VT0+1}, v{Snxt+3}, v{Snxt+4}, v{Snxt+5}", 4),
        (f"v_max3_f32 v{VT0+2}, v{Snxt+6}, v{Snxt+7}, v{Snxt+8}", 4),
        (f"v_max3_f32 v{VT0+3}, v{Snxt+9}, v{Snxt+10}, v{Snxt+11}", 4),
        (f"v_max3_f32 v{VT0+4}, v{Snxt+12}, v{Snxt+13}, v{Snxt+14}", 4),
        (f"v_max3_f32 v{VT0}, v{VT0}, v{VT0+1}, v{VT0+2}", 4),
        (f"v_max3_f32 v{VT0+3}, v{VT0+3}, v{VT0+4}, v{Snxt+15}", 4),
        (f"v_max_f32 v{VTA}, v{VT0}, v{VT0+3}", 4),
        (f"v_max_f32 v{VTB}, v{VT0}, v{VT0+3}", 4),
        None,
        (f"v_permlane32_swap_b32 v{VTA}, v{VTB}", 4),
        (f"v_max_f32 v{VTA}, v{VTA}, v{VTB}", 4),
        (f"v_cmp_gt_f32 vcc, v{VTA}, v{VTHR}", 4),
    ]
    BAR = 32 - D - 1
    dma = []
    if do_dma:
        ks_slot, vs_slot = u, (u + 3) & 3
        dma.append([f"s_add_u32 m0, s{S_W4096}, {ks_slot*16384}", f"s_add_u32 s{S_KOFF}, s{S_KOFF}, 16384"])
        for i in range(4):
            dma.append([f"buffer_load_dwordx4 v{VKD+i}, s[12:15], s{S_KOFF} offen offset:{i*1024} lds"])
        dma.append([f"s_add_u32 m0, s{S_W4096}, {65536+vs_slot*16384}", f"s_add_u32 s{S_VOFF}, s{S_VOFF}, 16384"])
        for i in range(4):
            dma.append([f"buffer_load_dwordx4 v{VVD+(i&1)}, s[16:19], s{S_VOFF} offen offset:{i*1024} lds"])

    exi = 0
    mxi = 0
    dmi = 0
    for i in range(32):
        if i % 4 == 0:
            if i < 16:
                b.need([("k", s) for s in range(i, i + 4)])
            else:
                b.need([("v", s) for s in range(i - 16, i - 12)])
        if i < 16:
            fr = 64 + 4 * (i % 8)
            cc = "0" if i == 0 else f"v[{Snxt}:{Snxt+15}]"
            b.I(f"v_mfma_f32_32x32x16_bf16 v[{Snxt}:{Snxt+15}], a[{fr}:{fr+3}], a[{4*i}:{4*i+3}], {cc}")
        else:
            idx = i - 16
            ks, db = idx >> 3, idx & 7
            fr = 96 + 4 * (idx % 8)
            b.I(f"v_mfma_f32_32x32x16_bf16 v[{16*db}:{16*db+15}], a[{fr}:{fr+3}], v[{P+4*ks}:{P+4*ks+3}], v[{16*db}:{16*db+15}]")
        budget = 24
        if i == BAR:
            b.I("s_waitcnt vmcnt(8)")
            b.I("s_barrier")
            budget -= 8
        read_for(i + D)
        budget -= 4 if (i + D < 16 or i + D >= 32) else 8
        if (i + 1) % 4 == 0:
            budget -= 4
        if i > BAR and dmi < len(dma):
            for t in dma[dmi]:
                b.I(t)
                budget -= 4
            dmi += 1
            if dmi < len(dma) and len(dma[dmi - 1]) == 2:
                for t in dma[dmi]:
                    b.I(t)
                    budget -= 4
                dmi += 1
        while exi < len(ex) and budget >= ex[exi][1]:
            b.I(ex[exi][0])
            budget -= ex[exi][1]
            exi += 1
        if exi == len(ex) and i >= 19:
            while mxi < len(mx) and budget >= 4:
                if mx[mxi] is None:
                    mxi += 1
                    break
                b.I(mx[mxi][0])
                budget -= 4
                mxi += 1
    assert exi == len(ex) and mxi == len(mx) and dmi == len(dma), (exi, mxi, dmi)


def gen_attn():
    b = Builder()
    name = "attn_kernel"
    kernel_head(b, name)
    b.I("s_cmp_ge_u32 s2, 256")
    b.I("s_cbranch_scc1 ATT_END")
    b.I("s_load_dwordx8 s[36:43], s[0:1], 0")
    b.I("s_load_dwordx2 s[44:45], s[0:1], 104")
    b.I("v_and_b32 v240, 63, v0")
    b.I("v_lshrrev_b32 v1, 6, v0")
    b.I("v_and_b32 v241, 31, v240")
    b.I("v_readfirstlane_b32 s28, v1")
    b.I("v_lshrrev_b32 v242, 5, v240")
    b.I("s_and_b32 s51, s2, 7")
    b.I("s_lshr_b32 s52, s2, 3")
    b.I("s_and_b32 s53, s52, 1")
    b.I("s_lshr_b32 s54, s52, 1")
    b.I("s_lshl_b32 s55, s51, 1")
    b.I("s_add_u32 s55, s55, s53")
    b.I("s_lshl_b32 s56, s54, 2")
    b.I("s_add_u32 s56, s56, s28")
    b.I("s_lshl_b32 s57, s56, 5")
    b.I("v_add_u32 v244, s57, v241")
    b.I("s_movk_i32 s30, 896")
    b.I("v_mul_lo_u32 v244, v244, s30")
    b.I("v_lshl_add_u32 v244, v242, 4, v244")
    b.I("s_lshl_b32 s29, s55, 9")
    b.I("s_lshr_b32 s30, s28, 1")
    b.I("s_lshl_b32 s30, s30, 8")
    b.I("s_add_u32 s29, s29, s30")
    b.I("s_and_b32 s30, s28, 1")
    b.I("s_lshl_b32 s30, s30, 18")
    b.I("s_add_u32 s29, s29, s30")
    b.I("s_waitcnt lgkmcnt(0)")
    srd(b, 4, 36, SZ_X)
    srd(b, 8, 42, 448 * 4096 * 2)
    srd(b, 12, 38, 8388608)
    srd(b, 16, 40, 8388608)
    srd(b, 20, 44, SZ_MOD, WS_MOD)
    srd(b, 24, 44, SZ_O, WS_O)
    b.I(f"s_lshl_b32 s{S_W4096}, s28, 12")
    b.I(f"s_lshl_b32 s{S_KOFF}, s51, 20")
    b.I(f"s_lshl_b32 s{S_VOFF}, s51, 20")
    b.I(f"s_mov_b32 s{SC}, {f32(CSCALE)}")

    ln_gemm(b, 8192, 1, 0, 98304)

    for blk in range(8):
        for hf in range(2):
            d = 128 + 4 * ((2 * blk + hf) % 4)
            pack_swap(b, 16 * blk + 8 * hf, d)
            for q in range(4):
                b.I(f"v_accvgpr_write_b32 a{4*(2*blk+hf)+q}, v{d+q}")
    b.I("v_lshlrev_b32 v0, 3, s28")
    b.I("v_add_u32 v0, v0, v242")
    b.I("v_lshlrev_b32 v1, 9, v0")
    for i in range(4):
        b.I(f"v_add_u32 v2, {2*i}, v0")
        b.I("v_and_b32 v2, 15, v2")
        b.I("v_xor_b32 v2, v2, v241")
        b.I(f"v_lshl_add_u32 v{VKD+i}, v2, 4, v1")
    for i in range(2):
        b.I(f"v_add_u32 v2, {2*i}, v242")
        b.I("v_lshlrev_b32 v2, 2, v2")
        b.I("v_xor_b32 v2, v2, v241")
        b.I(f"v_lshl_add_u32 v{VVD+i}, v2, 4, v1")
    b.I("s_barrier")
    for t in range(4):
        b.I(f"s_add_u32 m0, s{S_W4096}, {t*16384}")
        b.I("s_nop 0")
        for i in range(4):
            b.I(f"buffer_load_dwordx4 v{VKD+i}, s[12:15], s{S_KOFF} offen offset:{i*1024} lds")
        if t < 3:
            b.I(f"s_add_u32 m0, s{S_W4096}, {65536+t*16384}")
            b.I("s_nop 0")
            for i in range(4):
                b.I(f"buffer_load_dwordx4 v{VVD+(i&1)}, s[16:19], s{S_VOFF} offen offset:{i*1024} lds")
            b.I(f"s_add_u32 s{S_KOFF}, s{S_KOFF}, 16384")
        if t < 2:
            b.I(f"s_add_u32 s{S_VOFF}, s{S_VOFF}, 16384")
    b.I("v_and_b32 v0, 15, v241")
    b.I("v_xor_b32 v0, v0, v242")
    b.I("v_lshlrev_b32 v1, 9, v241")
    for s in range(8):
        b.I(f"v_xor_b32 v2, {2*s}, v0")
        b.I(f"v_lshl_add_u32 v{VKA+s}, v2, 4, v1")
    b.I("v_lshrrev_b32 v0, 4, v240")
    b.I("v_and_b32 v1, 15, v240")
    b.I("v_lshrrev_b32 v2, 2, v1")
    b.I("v_lshrrev_b32 v3, 1, v0")
    b.I("v_lshl_add_u32 v3, v3, 2, v2")
    b.I("v_lshlrev_b32 v3, 9, v3")
    b.I("v_and_b32 v4, 1, v0")
    b.I("v_lshl_add_u32 v3, v4, 5, v3")
    b.I("v_and_b32 v4, 3, v1")
    b.I("v_lshl_add_u32 v3, v4, 3, v3")
    b.I("v_add_u32 v3, 0x10000, v3")
    for db in range(4):
        b.I(f"v_xor_b32 v4, {db}, v2")
        b.I(f"v_lshl_add_u32 v{VVA+db}, v4, 6, v3")
    for r in range(128):
        b.I(f"v_mov_b32 v{r}, 0")
    b.I(f"v_mov_b32 v{VL0}, 0")
    b.I(f"v_mov_b32 v{VL1}, 0")
    b.I("s_waitcnt vmcnt(0)")
    b.I("s_barrier")
    for s in range(16):
        fr = 64 + 4 * (s % 8)
        if s == 8:
            b.lds_drain()
        b.lds(f"ds_read_b128 a[{fr}:{fr+3}], v{VKA+(s&7)} offset:{(s>>3)*256}", tag=("k0", s))
        if s % 8 == 7:
            b.lds_drain()
            for s2 in range(s - 7, s + 1):
                fr2 = 64 + 4 * (s2 % 8)
                cc = "0" if s2 == 0 else "v[128:143]"
                b.I(f"v_mfma_f32_32x32x16_bf16 v[128:143], a[{fr2}:{fr2+3}], a[{4*s2}:{4*s2+3}], {cc}")
    b.I("s_nop 15")
    b.I(f"v_max3_f32 v{VT0}, v128, v129, v130")
    for r in range(3, 15, 2):
        b.I(f"v_max3_f32 v{VT0}, v{VT0}, v{128+r}, v{129+r}")
    b.I(f"v_max_f32 v{VTA}, v{VT0}, v143")
    b.I(f"v_mov_b32 v{VTB}, v{VTA}")
    b.I("s_nop 1")
    b.I(f"v_permlane32_swap_b32 v{VTA}, v{VTB}")
    b.I(f"v_max_f32 v{VM}, v{VTA}, v{VTB}")
    b.I(f"v_mul_f32 v{VMC}, s{SC}, v{VM}")
    b.I(f"v_add_f32 v{VTHR}, {f32(8.0/CSCALE)}, v{VM}")
    for s in range(8):
        fr = 64 + 4 * s
        b.lds(f"ds_read_b128 a[{fr}:{fr+3}], v{VKA+s} offset:{16384}", tag=("k", s))
    b.I(f"s_mov_b32 s{S_CNT}, 0")
    b.raw(".p2align 6")
    b.L("ATT_LOOP")
    start = len(b.items)
    for u in range(4):
        attn_iter(b, u)
        if u == 3:
            b.I(f"s_add_u32 s{S_CNT}, s{S_CNT}, 1")
            b.I(f"s_cmp_eq_u32 s{S_CNT}, 16")
            b.I("s_cbranch_scc1 ATT_EPI")
        b.I(f"s_cbranch_vccnz ATT_RS{u}")
        b.L(f"ATT_BK{u}")
    b.I("s_branch ATT_LOOP")
    for u in range(4):
        b.L(f"ATT_RS{u}")
        b.I("s_nop 15")
        b.I(f"v_max_f32 v{VTA}, v{VTA}, v{VM}")
        b.I(f"v_sub_f32 v{VTB}, v{VM}, v{VTA}")
        b.I(f"v_mul_f32 v{VTB}, s{SC}, v{VTB}")
        b.I(f"v_exp_f32 v{VTB}, v{VTB}")
        b.I(f"v_mov_b32 v{VM}, v{VTA}")
        b.I(f"v_mul_f32 v{VMC}, s{SC}, v{VM}")
        b.I(f"v_add_f32 v{VTHR}, {f32(8.0/CSCALE)}, v{VM}")
        b.I(f"v_mul_f32 v{VL0}, v{VL0}, v{VTB}")
        b.I(f"v_mul_f32 v{VL1}, v{VL1}, v{VTB}")
        for r in range(128):
            b.I(f"v_mul_f32 v{r}, v{r}, v{VTB}")
        b.I(f"s_branch ATT_BK{u}")
    b.L("ATT_EPI")
    b.I("s_nop 15")
    b.I(f"v_add_f32 v{VL0}, v{VL0}, v{VL1}")
    b.I(f"v_mov_b32 v{VL1}, v{VL0}")
    b.I("s_nop 1")
    b.I(f"v_permlane32_swap_b32 v{VL0}, v{VL1}")
    b.I(f"v_add_f32 v{VL0}, v{VL0}, v{VL1}")
    b.I(f"v_rcp_f32 v{VL0}, v{VL0}")
    b.I("v_lshlrev_b32 v239, 4, v240")
    b.I("s_lshl_b32 s58, s56, 18")
    b.I("s_lshl_b32 s59, s55, 14")
    b.I("s_add_u32 s58, s58, s59")
    for blk in range(8):
        for hf in range(2):
            f = 2 * blk + hf
            src = 16 * blk + 8 * hf
            for r in range(8):
                b.I(f"v_mul_f32 v{src+r}, v{src+r}, v{VL0}")
            d = 128 + 4 * (f % 8)
            pack_swap(b, src, d)
            if f % 4 == 0 and f:
                b.I("s_add_u32 s58, s58, 4096")
            b.I(f"buffer_store_dwordx4 v[{d}:{d+3}], v239, s[24:27], s58 offen offset:{(f%4)*1024}")
    b.I("s_waitcnt vmcnt(0) lgkmcnt(0)")
    b.L("ATT_END")
    b.I("s_endpgm")
    b.check(name)
    return b.text() + kernel_desc(name, 384, 256)


def gen_ffn_up():
    b = Builder()
    name = "ffnup_kernel"
    kernel_head(b, name)
    b.I("s_cmp_ge_u32 s2, 224")
    b.I("s_cbranch_scc1 UP_END")
    b.I("s_load_dwordx4 s[36:39], s[0:1], 48")
    b.I("s_load_dwordx2 s[44:45], s[0:1], 104")
    b.I("v_and_b32 v240, 63, v0")
    b.I("v_lshrrev_b32 v1, 6, v0")
    b.I("v_and_b32 v241, 31, v240")
    b.I("v_readfirstlane_b32 s28, v1")
    b.I("v_lshrrev_b32 v242, 5, v240")
    b.I("s_and_b32 s51, s2, 7")
    b.I("s_lshr_b32 s52, s2, 3")
    b.I("s_cmp_ge_u32 s52, 14")
    b.I("s_cselect_b32 s53, 8, 0")
    b.I("s_cselect_b32 s54, 14, 0")
    b.I("s_add_u32 s53, s53, s51")
    b.I("s_sub_u32 s54, s52, s54")
    b.I("s_lshl_b32 s56, s53, 2")
    b.I("s_add_u32 s56, s56, s28")
    b.I("s_lshl_b32 s57, s56, 5")
    b.I("v_add_u32 v244, s57, v241")
    b.I("s_movk_i32 s30, 896")
    b.I("v_mul_lo_u32 v244, v244, s30")
    b.I("v_lshl_add_u32 v244, v242, 4, v244")
    b.I("s_lshl_b32 s29, s54, 8")
    b.I("s_and_b32 s30, s28, 1")
    b.I("s_mul_i32 s30, s30, 114688")
    b.I("s_add_u32 s29, s29, s30")
    b.I("s_waitcnt lgkmcnt(0)")
    srd(b, 4, 44, SZ_X, WS_X1)
    b.I("s_cmp_ge_u32 s28, 2")
    b.I("s_cselect_b32 s8, s38, s36")
    b.I("s_cselect_b32 s9, s39, s37")
    b.I(f"s_mov_b32 s10, {448*1792*2}")
    b.I("s_mov_b32 s11, 0x00020000")
    srd(b, 20, 44, SZ_MOD, WS_MOD)
    srd(b, 24, 44, SZ_ACT, WS_ACT)
    ln_gemm(b, 3584, 4, 3, 0)
    b.I(f"s_mov_b32 s40, {f32(-LOG2E)}")
    b.I("v_lshlrev_b32 v239, 4, v240")
    b.I("s_mul_i32 s58, s56, 114688")
    b.I("s_lshl_b32 s59, s54, 13")
    b.I("s_add_u32 s58, s58, s59")
    for blk in range(4):
        for hf in range(2):
            f = 2 * blk + hf
            g0 = 16 * blk + 8 * hf
            u0 = 64 + g0
            t0 = 128 + 8 * (f % 2)
            for r in range(8):
                b.I(f"v_cvt_pk_bf16_f32 v{g0+r}, 0, v{g0+r}")
            for r in range(8):
                b.I(f"v_mul_f32 v{t0+r}, s40, v{g0+r}")
            for r in range(8):
                b.I(f"v_exp_f32 v{t0+r}, v{t0+r}")
            for r in range(8):
                b.I(f"v_cvt_pk_bf16_f32 v{u0+r}, 0, v{u0+r}")
            for r in range(8):
                b.I(f"v_add_f32 v{t0+r}, 1.0, v{t0+r}")
            for r in range(8):
                b.I(f"v_rcp_f32 v{t0+r}, v{t0+r}")
            b.I("s_nop 0")
            for r in range(8):
                b.I(f"v_mul_f32 v{t0+r}, v{g0+r}, v{t0+r}")
            for r in range(8):
                b.I(f"v_cvt_pk_bf16_f32 v{t0+r}, 0, v{t0+r}")
            for r in range(8):
                b.I(f"v_mul_f32 v{t0+r}, v{t0+r}, v{u0+r}")
            d = 160 + 4 * (f % 8)
            pack_swap(b, t0, d)
            if f % 4 == 0 and f:
                b.I("s_add_u32 s58, s58, 4096")
            b.I(f"buffer_store_dwordx4 v[{d}:{d+3}], v239, s[24:27], s58 offen offset:{(f%4)*1024}")
    b.I("s_waitcnt vmcnt(0)")
    b.L("UP_END")
    b.I("s_endpgm")
    b.check(name)
    return b.text() + kernel_desc(name, 352, 256)


def gen_splitk(name, K, a_off, a_size, w_arg, xin_from_ws, seg_gate, out_to_ws):
    b = Builder()
    kernel_head(b, name)
    END = name.upper() + "_END"
    nst = K // 32 // 4
    KS = K // 16
    NR = 4
    b.I("s_cmp_ge_u32 s2, 224")
    b.I(f"s_cbranch_scc1 {END}")
    b.I(f"s_load_dwordx2 s[36:37], s[0:1], {w_arg}")
    b.I("s_load_dwordx2 s[38:39], s[0:1], 0")
    b.I("s_load_dwordx2 s[40:41], s[0:1], 88")
    b.I("s_load_dwordx2 s[44:45], s[0:1], 104")
    b.I("v_and_b32 v160, 63, v0")
    b.I("v_lshrrev_b32 v1, 6, v0")
    b.I("v_and_b32 v161, 31, v160")
    b.I("v_readfirstlane_b32 s28, v1")
    b.I("v_lshrrev_b32 v162, 5, v160")
    b.I("s_and_b32 s51, s2, 7")
    b.I("s_lshr_b32 s52, s2, 3")
    b.I("s_mul_i32 s53, s52, 37")
    b.I("s_lshr_b32 s53, s53, 8")
    b.I("s_mul_i32 s54, s53, 7")
    b.I("s_sub_u32 s54, s52, s54")
    b.I("s_lshl_b32 s53, s53, 3")
    b.I("s_add_u32 s53, s53, s51")
    b.I("v_lshlrev_b32 v163, 4, v160")
    b.I(f"v_add_u32 v164, {KS*1024}, v163")
    b.I(f"s_mul_i32 s29, s53, {2*KS*1024}")
    b.I("s_lshl_b32 s30, s28, 11")
    b.I("s_add_u32 s29, s29, s30")
    b.I("v_lshrrev_b32 v0, 3, v160")
    b.I("v_and_b32 v1, 7, v160")
    b.I("v_bfe_u32 v2, v160, 4, 1")
    b.I("v_lshlrev_b32 v2, 2, v2")
    b.I("v_xor_b32 v1, v1, v2")
    b.I("v_lshlrev_b32 v1, 4, v1")
    b.I("v_mul_u32_u24 v165, 896, v0")
    b.I("v_add_u32 v165, v165, v1")
    b.I("s_lshl_b32 s30, s54, 7")
    b.I("s_mul_i32 s31, s28, 28672")
    b.I("s_add_u32 s30, s30, s31")
    b.I(f"s_mul_i32 s31, s28, {NR*4096}")
    b.I("v_lshrrev_b32 v0, 4, v160")
    b.I("v_and_b32 v1, 15, v160")
    b.I("v_lshrrev_b32 v2, 2, v1")
    b.I("v_lshrrev_b32 v3, 1, v0")
    b.I("v_lshl_add_u32 v3, v3, 3, v2")
    b.I("v_lshlrev_b32 v3, 7, v3")
    b.I("v_and_b32 v4, 1, v0")
    b.I("v_lshl_add_u32 v3, v4, 5, v3")
    b.I("v_and_b32 v4, 3, v1")
    b.I("v_lshl_add_u32 v3, v4, 3, v3")
    b.I("v_add_u32 v3, s31, v3")
    b.I("v_lshrrev_b32 v2, 3, v1")
    for nb in range(2):
        b.I(f"v_xor_b32 v4, {nb}, v2")
        b.I(f"v_lshl_add_u32 v{166+nb}, v4, 6, v3")
    b.I("s_waitcnt lgkmcnt(0)")
    srd(b, 4, 44, a_size, a_off)
    srd(b, 8, 36, K * 448 * 2)
    if xin_from_ws:
        srd(b, 12, 44, SZ_X, WS_X1)
    else:
        srd(b, 12, 38, SZ_X)
    if out_to_ws:
        srd(b, 16, 44, SZ_X, WS_X1)
    else:
        srd(b, 16, 40, SZ_X)
    srd(b, 20, 44, SZ_MOD, WS_MOD)

    def issue(st):
        p = st % NR
        b.I(f"s_add_u32 s33, s29, {st*8192}")
        for ks in range(2):
            for rb in range(2):
                r = 64 + 16 * p + 4 * (2 * ks + rb)
                b.I(f"buffer_load_dwordx4 v[{r}:{r+3}], v{163+rb}, s[4:7], s33 offen offset:{ks*1024}")
        for i in range(4):
            b.I(f"s_add_u32 m0, s31, {p*4096+i*1024}")
            b.I(f"s_add_u32 s34, s30, {(st*128+8*i)*896}")
            b.I("buffer_load_dwordx4 v165, s[8:11], s34 offen lds")

    for st in range(min(NR, nst)):
        issue(st)
    for st in range(nst):
        p = st % NR
        after = min(NR - 1, nst - 1 - st)
        b.I(f"s_waitcnt vmcnt({8*after})")
        for ks in range(2):
            for nb in range(2):
                fr = 128 + 4 * (2 * ks + nb)
                for r2 in range(2):
                    b.lds(f"ds_read_b64_tr_b16 v[{fr+2*r2}:{fr+2*r2+1}], v{166+nb} offset:{p*4096+(16*ks+4*r2)*128}",
                          tag=("w", ks, nb))
        for ks in range(2):
            for nb in range(2):
                b.need([("w", ks, nb)])
                fr = 128 + 4 * (2 * ks + nb)
                for rb in range(2):
                    a = 16 * (2 * nb + rb)
                    r = 64 + 16 * p + 4 * (2 * ks + rb)
                    cc = "0" if (st == 0 and ks == 0) else f"v[{a}:{a+15}]"
                    b.I(f"v_mfma_f32_32x32x16_bf16 v[{a}:{a+15}], v[{fr}:{fr+3}], v[{r}:{r+3}], {cc}")
        if st + NR < nst:
            issue(st + NR)
    b.I("s_nop 15")
    b.I("s_barrier")
    b.I("s_lshr_b32 s55, s28, 1")
    b.I("s_and_b32 s56, s28, 1")
    b.I("s_lshl_b32 s57, s53, 6")
    b.I("s_lshl_b32 s58, s56, 5")
    b.I("s_add_u32 s57, s57, s58")
    b.I("v_add_u32 v168, s57, v161")
    b.I("v_mul_u32_u24 v168, 896, v168")
    b.I("v_lshl_add_u32 v168, v162, 3, v168")
    b.I("s_lshl_b32 s58, s54, 7")
    b.I("s_lshl_b32 s59, s55, 6")
    b.I("s_add_u32 s58, s58, s59")
    for q in range(4):
        b.I(f"buffer_load_dwordx2 v[{128+2*q}:{129+2*q}], v168, s[12:15], s58 offen offset:{16*q}")
    b.I("v_lshlrev_b32 v169, 4, v162")
    b.I("s_lshl_b32 s59, s58, 1")
    b.I(f"s_add_u32 s59, s59, {seg_gate*1792}")
    for q in range(4):
        b.I(f"buffer_load_dwordx4 v[{136+4*q}:{139+4*q}], v169, s[20:23], s59 offen offset:{32*q}")
    for t in range(4):
        b.I(f"s_sub_u32 s60, s28, {t+1}")
        b.I("s_and_b32 s60, s60, 3")
        b.I("s_cmp_eq_u32 s60, 3")
        b.I(f"s_cbranch_scc1 {name.upper()}_SK{t}")
        b.I("s_lshl_b32 s60, s60, 12")
        b.I(f"s_add_u32 s60, s60, {t*12288}")
        b.I("v_add_u32 v170, s60, v163")
        for q in range(4):
            b.I(f"ds_write_b128 v170, v[{16*t+4*q}:{16*t+4*q+3}] offset:{1024*q}")
        b.L(f"{name.upper()}_SK{t}")
    b.I("s_waitcnt lgkmcnt(0)")
    b.I("s_barrier")
    b.I("s_mul_i32 s60, s28, 12288")
    b.I("v_add_u32 v170, s60, v163")
    for sl in range(3):
        for q in range(4):
            b.I(f"ds_read_b128 v[{64+16*sl+4*q}:{64+16*sl+4*q+3}], v170 offset:{4096*sl+1024*q}")
    for t in range(4):
        b.I(f"s_cmp_lg_u32 s28, {t}")
        b.I(f"s_cbranch_scc1 {name.upper()}_MV{t}")
        for r in range(16):
            b.I(f"v_mov_b32 v{112+r}, v{16*t+r}")
        b.L(f"{name.upper()}_MV{t}")
    b.I("s_waitcnt lgkmcnt(0)")
    for sl in range(3):
        for r in range(16):
            b.I(f"v_add_f32 v{112+r}, v{112+r}, v{64+16*sl+r}")
    b.I("s_waitcnt vmcnt(0)")
    for q in range(4):
        for e in range(4):
            r = 112 + 4 * q + e
            b.I(f"v_cvt_pk_bf16_f32 v{r}, 0, v{r}")
            b.I(f"v_mul_f32 v{r}, v{r}, v{136+4*q+e}")
            b.I(f"v_cvt_pk_bf16_f32 v{r}, 0, v{r}")
            xs = 128 + 2 * q + (e >> 1)
            if e & 1:
                b.I(f"v_and_b32 v152, 0xffff0000, v{xs}")
            else:
                b.I(f"v_lshlrev_b32 v152, 16, v{xs}")
            b.I(f"v_add_f32 v{r}, v{r}, v152")
        b.I(f"v_cvt_pk_bf16_f32 v{154+2*q}, v{112+4*q}, v{113+4*q}")
        b.I(f"v_cvt_pk_bf16_f32 v{155+2*q}, v{114+4*q}, v{115+4*q}")
        b.I(f"buffer_store_dwordx2 v[{154+2*q}:{155+2*q}], v168, s[16:19], s58 offen offset:{16*q}")
    b.I("s_waitcnt vmcnt(0)")
    b.L(END)
    b.I("s_endpgm")
    b.check(name)
    return b.text() + kernel_desc(name, 176, 176)


HEADER = """; adaLN + GQA attention (cached K/V) + SwiGLU FFN block, gfx950.  Generated by gen/gen.py (own generator).
; @launch kernel=mod_kernel grid=(84,1,1) block=(256,1,1) lds=9216
; @launch kernel=attn_kernel grid=(256,1,1) block=(256,1,1) lds=163840
; @launch kernel=oproj_kernel grid=(224,1,1) block=(256,1,1) lds=65536
; @launch kernel=ffnup_kernel grid=(224,1,1) block=(256,1,1) lds=65536
; @launch kernel=ffndown_kernel grid=(224,1,1) block=(256,1,1) lds=65536
.amdgcn_target "amdgcn-amd-amdhsa--gfx950"
"""


def main():
    out = HEADER
    out += gen_mod()
    out += gen_attn()
    out += gen_splitk("oproj_kernel", 4096, WS_O, SZ_O, 32, False, 2, True)
    out += gen_ffn_up()
    out += gen_splitk("ffndown_kernel", 1792, WS_ACT, SZ_ACT, 64, True, 5, False)
    path = sys.argv[1] if len(sys.argv) > 1 else "adaLN_cond__gqa_block_cached__swiglu_ffn__prompt.s"
    open(path, "w").write(out)
    print("wrote", path, len(out))


if __name__ == "__main__":
    main()
```

```python
import re

_REG = re.compile(r"\b([vas])\[(\d+):(\d+)\]|\b([vas])(\d+)\b")


def regs_of(op):
    out = []
    for m in _REG.finditer(op):
        if m.group(1):
            out += [f"{m.group(1)}{i}" for i in range(int(m.group(2)), int(m.group(3)) + 1)]
        else:
            out.append(f"{m.group(4)}{m.group(5)}")
    return out


TRANS = ("v_exp_f32", "v_rcp_f32", "v_rsq_f32", "v_sqrt_f32", "v_log_f32")


class Ins:
    __slots__ = ("text", "op", "kind", "wr", "rd", "states")

    def __init__(self, text):
        self.text = text
        t = text.split(";")[0].strip()
        parts = t.split(None, 1)
        self.op = parts[0]
        ops = [o.strip() for o in parts[1].split(",")] if len(parts) > 1 else []
        self.states = 1
        op = self.op
        self.wr, self.rd = [], []
        if op == "s_nop":
            self.kind = "nop"
            self.states = int(ops[0], 0) + 1
        elif op.startswith("v_mfma"):
            self.kind = "mfma"
            self.wr = regs_of(ops[0])
            self.rd = [regs_of(o) for o in ops[1:4]]
        elif op.startswith("v_permlane"):
            self.kind = "perm"
            self.wr = regs_of(ops[0]) + regs_of(ops[1])
            self.rd = self.wr
        elif op.startswith("v_"):
            self.kind = "trans" if op in TRANS else "valu"
            if op.startswith("v_cmp"):
                self.wr = regs_of(ops[0]) if not ops[0].startswith("vcc") else ["vcc"]
                self.rd = sum((regs_of(o) for o in ops[1:]), [])
            else:
                self.wr = regs_of(ops[0])
                self.rd = sum((regs_of(o) for o in ops[1:]), [])
                if op.startswith("v_fmac") or op.startswith("v_dot2c"):
                    self.rd += self.wr
        elif op.startswith("ds_read"):
            self.kind = "lds"
            self.wr = regs_of(ops[0])
            self.rd = regs_of(ops[1].split()[0])
        elif op.startswith("ds_write"):
            self.kind = "lds"
            self.rd = sum((regs_of(o.split()[0]) for o in ops), [])
        elif op.startswith("buffer_load"):
            self.kind = "vmem"
            if " lds" in t:
                self.rd = sum((regs_of(o.split()[0]) for o in ops), [])
            else:
                self.wr = regs_of(ops[0])
                self.rd = sum((regs_of(o.split()[0]) for o in ops[1:]), [])
        elif op.startswith("buffer_store"):
            self.kind = "vmem"
            self.rd = sum((regs_of(o.split()[0]) for o in ops), [])
        else:
            self.kind = "other"


class Builder:
    def __init__(self):
        self.items = []
        self.lds_seq = 0
        self.lds_done = 0
        self.tags = {}

    def I(self, text):
        ins = Ins(text)
        self.items.append(ins)
        return ins

    def raw(self, text):
        self.items.append(text)

    def L(self, name):
        self.items.append(name + ":")

    def lds(self, text, tag=None):
        self.I(text)
        self.lds_seq += 1
        if tag is not None:
            self.tags[tag] = self.lds_seq

    def need(self, tags):
        hi = max(self.tags[t] for t in tags)
        if hi <= self.lds_done:
            return
        n = min(self.lds_seq - hi, 15)
        self.I(f"s_waitcnt lgkmcnt({n})")
        self.lds_done = self.lds_seq - n

    vm_seq = 0
    vm_done = 0

    def vm(self, text, tag=None):
        self.I(text)
        self.vm_seq += 1
        if tag is not None:
            self.tags[tag] = self.vm_seq

    def vneed(self, tags):
        hi = max(self.tags[t] for t in tags)
        if hi <= self.vm_done:
            return
        n = self.vm_seq - hi
        assert n <= 63, n
        self.I(f"s_waitcnt vmcnt({n})")
        self.vm_done = hi

    def vm_drain(self):
        self.I("s_waitcnt vmcnt(0)")
        self.vm_done = self.vm_seq

    def lds_drain(self):
        self.I("s_waitcnt lgkmcnt(0)")
        self.lds_done = self.lds_seq

    def text(self):
        out = []
        for it in self.items:
            out.append(it if isinstance(it, str) else "    " + it.text)
        return "\n".join(out) + "\n"

    def check(self, name=""):
        ins = [i for i in self.items if not isinstance(i, str)]
        errs = []
        for p, cur in enumerate(ins):
            dist = 0
            q = p - 1
            while q >= 0 and dist < 20:
                prev = ins[q]
                if cur.kind == "mfma":
                    allrd = set(sum(cur.rd, []))
                    if prev.kind in ("valu", "trans", "perm") and dist < 2 and allrd & set(prev.wr):
                        errs.append((p, "VALU->MFMA", prev.text, cur.text))
                    if prev.kind == "mfma":
                        if dist < 12 and set(cur.rd[0] + cur.rd[1]) & set(prev.wr):
                            errs.append((p, "MFMA->MFMA A/B", prev.text, cur.text))
                        c = cur.rd[2]
                        if c and set(c) & set(prev.wr) and c != prev.wr and dist < 10:
                            errs.append((p, "MFMA->MFMA C overlap", prev.text, cur.text))
                elif cur.kind in ("valu", "trans", "perm", "lds", "vmem"):
                    if prev.kind == "mfma" and dist < 12 and (set(cur.rd) | set(cur.wr)) & set(prev.wr):
                        errs.append((p, "MFMA->use", prev.text, cur.text))
                    if prev.kind == "mfma" and cur.kind in ("valu", "trans", "perm") and dist < 7 \
                            and set(cur.wr) & set(prev.rd[2]):
                        errs.append((p, "MFMA C WAR", prev.text, cur.text))
                    if prev.kind == "trans" and cur.kind in ("valu", "perm") and dist < 1 and set(cur.rd) & set(prev.wr):
                        errs.append((p, "trans->VALU", prev.text, cur.text))
                    if cur.kind == "perm" and prev.kind in ("valu", "trans") and dist < 2 and set(cur.rd) & set(prev.wr):
                        errs.append((p, "VALU->permlane", prev.text, cur.text))
                    if prev.kind in ("valu",) and prev.op.startswith(("v_readfirstlane", "v_readlane")):
                        if cur.kind == "vmem" and dist < 5 and set(cur.rd) & set(prev.wr):
                            errs.append((p, "VALU sgpr->VMEM", prev.text, cur.text))
                        if cur.kind in ("valu", "trans") and dist < 2 and set(cur.rd) & set(prev.wr):
                            errs.append((p, "VALU sgpr->VALU", prev.text, cur.text))
                    if cur.op.startswith(("v_readfirstlane", "v_readlane")) and prev.kind in ("valu", "trans") \
                            and dist < 1 and set(cur.rd) & set(prev.wr):
                        errs.append((p, "VALU->readlane", prev.text, cur.text))
                    if prev.op.startswith("buffer_store_dwordx4") and cur.kind in ("valu", "trans", "perm") and dist < 2 \
                            and set(cur.wr) & set(prev.rd):
                        errs.append((p, "store WAR", prev.text, cur.text))
                    if prev.op.startswith("v_dot2") and cur.kind in ("valu", "trans", "perm") and dist < 3 \
                            and not cur.op.startswith("v_dot2") and (set(cur.rd) | set(cur.wr)) & set(prev.wr):
                        errs.append((p, "dot->VALU", prev.text, cur.text))
                dist += prev.states
                q -= 1
        for e in errs[:20]:
            print("HAZARD", name, e)
        return len(errs)
```

```python
import struct
import sys
import os

sys.path.insert(0, os.path.dirname(__file__))
from asmlib import Builder

WS_MOD = 0
WS_O = 0x100000
WS_X1 = 0x1200000
WS_ACT = 0x1400000
WS_N1 = 0x1C00000
SZ_X = 2048 * 448 * 2
SZ_O = 2048 * 4096 * 2
SZ_ACT = 2048 * 1792 * 2
SZ_MOD = 2688 * 4


def f32(x):
    return "0x%08x" % struct.unpack("<I", struct.pack("<f", x))[0]


LOG2E = 1.4426950408889634
CSCALE = LOG2E / 16.0
TLAZY = 40.0


def srd(b, d, lo, size, off=0):
    if off:
        b.I(f"s_add_u32 s{d}, s{lo}, {off}")
        b.I(f"s_addc_u32 s{d+1}, s{lo+1}, 0")
    else:
        b.I(f"s_mov_b32 s{d}, s{lo}")
        b.I(f"s_mov_b32 s{d+1}, s{lo+1}")
    b.I(f"s_mov_b32 s{d+2}, {size}")
    b.I(f"s_mov_b32 s{d+3}, 0x00020000")


def stamp(b, idx):
    if "stamp" not in os.environ.get("EXP", ""):
        return
    b.I("s_memtime s[90:91]")
    b.I("s_memrealtime s[92:93]")
    b.I("s_waitcnt lgkmcnt(0)")
    b.I(f"s_mov_b32 s{70+2*idx}, s90")
    b.I(f"s_mov_b32 s{71+2*idx}, s92")


_SF = [0]


def stamp_flush(b, n):
    if "stamp" not in os.environ.get("EXP", ""):
        return
    _SF[0] += 1
    b.I("s_load_dwordx2 s[94:95], s[0:1], 96")
    b.I("s_waitcnt lgkmcnt(0)")
    b.I("s_mov_b32 s96, s94")
    b.I("s_mov_b32 s97, s95")
    b.I("s_mov_b32 s98, 256")
    b.I("s_mov_b32 s99, 0x00020000")
    b.I("s_cmp_lg_u32 s2, 5")
    b.I(f"s_cbranch_scc1 STAMP_SKIP{_SF[0]}")
    b.I("s_cmp_lg_u32 s28, 0")
    b.I(f"s_cbranch_scc1 STAMP_SKIP{_SF[0]}")
    b.I("v_mov_b32 v0, 0")
    for i in range(2 * n):
        b.I(f"v_mov_b32 v1, s{70+i}")
        b.I(f"buffer_store_dword v1, v0, s[96:99], 0 offen offset:{4*i}")
    b.I("s_waitcnt vmcnt(0)")
    b.L(f"STAMP_SKIP{_SF[0]}")


def kernel_head(b, name):
    b.raw(".text")
    b.raw(f".globl {name}")
    b.raw(".p2align 8")
    b.raw(f".type {name},@function")
    b.L(name)


def kernel_desc(name, vgpr, accum, sgpr=102):
    return f""".section .rodata,"a"
.p2align 6
.amdhsa_kernel {name}
  .amdhsa_next_free_vgpr {vgpr}
  .amdhsa_next_free_sgpr {sgpr}
  .amdhsa_accum_offset {accum}
  .amdhsa_group_segment_fixed_size 0
  .amdhsa_kernarg_size 112
  .amdhsa_user_sgpr_count 2
  .amdhsa_user_sgpr_kernarg_segment_ptr 1
  .amdhsa_system_sgpr_workgroup_id_x 1
.end_amdhsa_kernel
"""


def gen_mod():
    b = Builder()
    name = "mod_kernel"
    kernel_head(b, name)
    b.I("s_cmp_ge_u32 s2, 148")
    b.I("s_cbranch_scc1 MOD_END")
    b.I("s_cmp_ge_u32 s2, 84")
    b.I("s_cbranch_scc1 NRM")
    b.I("s_load_dwordx4 s[4:7], s[0:1], 72")
    b.I("s_load_dwordx2 s[8:9], s[0:1], 104")
    b.I("v_and_b32 v1, 3, v0")
    b.I("v_lshrrev_b32 v2, 2, v0")
    b.I("v_mul_u32_u24 v3, 7, v2")
    b.I("v_lshlrev_b32 v4, 1, v3")
    b.I("s_movk_i32 s30, 5376")
    b.I("v_mul_lo_u32 v5, v3, s30")
    b.I("v_lshl_add_u32 v5, v1, 4, v5")
    b.I("s_lshl_b32 s31, s2, 6")
    b.I("v_add_u32 v5, s31, v5")
    b.I("s_waitcnt lgkmcnt(0)")
    srd(b, 12, 4, 896)
    srd(b, 16, 6, 448 * 2688 * 2)
    srd(b, 20, 8, SZ_MOD, WS_MOD)
    for i in range(7):
        b.I(f"buffer_load_ushort v{10+i}, v4, s[12:15], 0 offen offset:{2*i}")
    for i in range(7):
        b.I(f"s_mov_b32 s{32+i}, {i*5376}")
        b.I(f"buffer_load_dwordx4 v[{20+4*i}:{23+4*i}], v5, s[16:19], s{32+i} offen")
    for j in range(8):
        b.I(f"v_mov_b32 v{50+j}, 0")
    b.I("s_waitcnt vmcnt(7)")
    b.I(f"s_mov_b32 s40, {f32(-LOG2E)}")
    for i in range(7):
        b.I(f"v_lshlrev_b32 v{10+i}, 16, v{10+i}")
        b.I(f"v_mul_f32 v60, s40, v{10+i}")
        b.I("v_exp_f32 v60, v60")
        b.I("s_nop 0")
        b.I("v_add_f32 v60, 1.0, v60")
        b.I("v_rcp_f32 v60, v60")
        b.I("s_nop 0")
        b.I(f"v_mul_f32 v60, v{10+i}, v60")
        b.I(f"v_cvt_pk_bf16_f32 v{10+i}, 0, v60")
    b.I("s_waitcnt vmcnt(0)")
    for i in range(7):
        for q in range(4):
            b.I(f"v_lshlrev_b32 v61, 16, v{20+4*i+q}")
            b.I(f"v_and_b32 v62, 0xffff0000, v{20+4*i+q}")
            b.I(f"v_fmac_f32 v{50+2*q}, v{10+i}, v61")
            b.I(f"v_fmac_f32 v{51+2*q}, v{10+i}, v62")
    b.I("v_lshlrev_b32 v6, 7, v2")
    b.I("v_lshl_add_u32 v6, v1, 5, v6")
    b.I("ds_write_b128 v6, v[50:53]")
    b.I("ds_write_b128 v6, v[54:57] offset:16")
    b.I("s_waitcnt lgkmcnt(0)")
    b.I("s_barrier")
    b.I("v_and_b32 v7, 31, v0")
    b.I("v_lshrrev_b32 v8, 5, v0")
    b.I("v_lshlrev_b32 v9, 10, v8")
    b.I("v_lshl_add_u32 v9, v7, 2, v9")
    for i in range(8):
        b.I(f"ds_read_b32 v{20+i}, v9 offset:{128*i}")
    b.I("s_waitcnt lgkmcnt(0)")
    for i in range(1, 8):
        b.I(f"v_add_f32 v20, v20, v{20+i}")
    b.I("v_lshlrev_b32 v9, 2, v0")
    b.I("ds_write_b32 v9, v20 offset:8192")
    b.I("s_waitcnt lgkmcnt(0)")
    b.I("s_barrier")
    b.I("v_cmp_gt_u32 vcc, 32, v0")
    b.I("s_and_saveexec_b64 s[44:45], vcc")
    b.I("s_cbranch_execz MOD_END")
    for i in range(8):
        b.I(f"ds_read_b32 v{20+i}, v9 offset:{8192+128*i}")
    b.I("s_waitcnt lgkmcnt(0)")
    for i in range(1, 8):
        b.I(f"v_add_f32 v20, v20, v{20+i}")
    b.I("v_cvt_pk_bf16_f32 v20, 0, v20")
    b.I("s_sub_u32 s46, s2, 14")
    b.I("s_cmp_lt_u32 s46, 14")
    b.I("s_cbranch_scc1 MOD_ONE")
    b.I("s_sub_u32 s46, s2, 56")
    b.I("s_cmp_lt_u32 s46, 14")
    b.I("s_cbranch_scc0 MOD_ST")
    b.L("MOD_ONE")
    b.I("v_add_f32 v20, 1.0, v20")
    b.I("v_cvt_pk_bf16_f32 v20, 0, v20")
    b.L("MOD_ST")
    b.I("s_lshl_b32 s31, s2, 7")
    b.I("buffer_store_dword v20, v9, s[20:23], s31 offen")
    b.I("s_waitcnt vmcnt(0)")
    b.I("s_endpgm")
    b.L("NRM")
    b.I("s_load_dwordx2 s[4:5], s[0:1], 0")
    b.I("s_load_dwordx2 s[8:9], s[0:1], 104")
    b.I("s_sub_u32 s26, s2, 84")
    b.I("v_lshrrev_b32 v1, 3, v0")
    b.I("v_and_b32 v2, 7, v0")
    b.I("v_mul_u32_u24 v3, 896, v1")
    b.I("v_mul_u32_u24 v4, 112, v2")
    b.I("v_add_u32 v3, v3, v4")
    b.I("s_mul_i32 s27, s26, 28672")
    b.I("s_waitcnt lgkmcnt(0)")
    srd(b, 12, 4, SZ_X)
    srd(b, 20, 8, SZ_X, WS_N1)
    for i in range(7):
        b.I(f"buffer_load_dwordx4 v[{8+4*i}:{11+4*i}], v3, s[12:15], s27 offen offset:{16*i}")
    b.I("s_waitcnt vmcnt(0)")
    for r in range(28):
        b.I(f"v_lshlrev_b32 v{40+2*r}, 16, v{8+r}")
        b.I(f"v_and_b32 v{41+2*r}, 0xffff0000, v{8+r}")

    def red8(reg, tmp):
        for off in (0x041F, 0x081F, 0x101F):
            b.I(f"ds_swizzle_b32 v{tmp}, v{reg} offset:{off:#x}")
            b.I("s_waitcnt lgkmcnt(0)")
            b.I(f"v_add_f32 v{reg}, v{reg}, v{tmp}")
    b.I("v_add_f32 v5, v40, v41")
    b.I("v_add_f32 v6, v42, v43")
    for r in range(44, 96, 2):
        b.I(f"v_add_f32 v5, v5, v{r}")
        b.I(f"v_add_f32 v6, v6, v{r+1}")
    b.I("v_add_f32 v5, v5, v6")
    red8(5, 7)
    b.I(f"s_mov_b32 s36, {f32(1.0/448.0)}")
    b.I("v_mul_f32 v5, s36, v5")
    b.I("v_mov_b32 v6, 0")
    b.I("v_mov_b32 v7, 0")
    for r in range(40, 96, 2):
        b.I(f"v_sub_f32 v96, v{r}, v5")
        b.I(f"v_sub_f32 v97, v{r+1}, v5")
        b.I("v_fmac_f32 v6, v96, v96")
        b.I("v_fmac_f32 v7, v97, v97")
    b.I("v_add_f32 v6, v6, v7")
    red8(6, 7)
    b.I("v_mul_f32 v6, s36, v6")
    b.I("v_cvt_pk_bf16_f32 v5, 0, v5")
    b.I("v_cvt_pk_bf16_f32 v6, 0, v6")
    b.I(f"v_add_f32 v6, {f32(1e-5)}, v6")
    b.I("v_cvt_pk_bf16_f32 v6, 0, v6")
    b.I("v_sqrt_f32 v6, v6")
    b.I("s_nop 0")
    b.I("v_cvt_pk_bf16_f32 v6, 0, v6")
    b.I("v_rcp_f32 v7, v6")
    b.I("s_nop 0")
    for r in range(40, 96):
        b.I(f"v_sub_f32 v{r}, v{r}, v5")
        b.I(f"v_cvt_pk_bf16_f32 v{r}, 0, v{r}")
        b.I(f"v_mul_f32 v96, v{r}, v7")
        b.I(f"v_fma_f32 v97, -v96, v6, v{r}")
        b.I(f"v_fma_f32 v{r}, v97, v7, v96")
    for r in range(28):
        b.I(f"v_cvt_pk_bf16_f32 v{8+r}, v{40+2*r}, v{41+2*r}")
    b.I("v_mul_u32_u24 v4, 7, v2")
    b.I("v_lshlrev_b32 v1, 4, v1")
    for i in range(7):
        b.I(f"v_add_u32 v96, {i}, v4")
        b.I("v_lshrrev_b32 v97, 1, v96")
        b.I("v_and_b32 v96, 1, v96")
        b.I("v_lshlrev_b32 v97, 10, v97")
        b.I("v_lshl_add_u32 v97, v96, 9, v97")
        b.I(f"v_add_u32 v{98+i}, v97, v1")
        b.I(f"buffer_store_dwordx4 v[{8+4*i}:{11+4*i}], v{98+i}, s[20:23], s27 offen")
    b.I("s_waitcnt vmcnt(0)")
    b.L("MOD_END")
    b.I("s_endpgm")
    b.check(name)
    return b.text() + kernel_desc(name, 112, 112)


def ln_gemm(b, rowstride, seg_shift, bufs, modbase, hook=None, prenorm=False):
    NB = len(bufs)
    b.I("s_mul_i32 s30, s56, 28672")
    for s in range(28):
        if s % 4 == 0 and s:
            b.I("s_add_u32 s30, s30, 4096")
        b.vm(f"buffer_load_dwordx4 v[{128+4*s}:{131+4*s}], v244, s[4:7], s30 offen offset:{1024*(s%4)}", tag=("x", s))
    b.I("v_lshlrev_b32 v0, 4, v240")
    b.I("s_lshl_b32 s32, s28, 10")
    b.I(f"s_add_u32 m0, s32, {modbase}")
    b.I(f"s_add_u32 s33, s32, {seg_shift*1792}")
    b.vm("buffer_load_dwordx4 v0, s[20:23], s33 offen lds", tag="mod")
    b.I("v_lshrrev_b32 v0, 4, v240")
    b.I("v_and_b32 v1, 15, v240")
    b.I("v_lshlrev_b32 v2, 2, v0")
    b.I("v_xor_b32 v1, v1, v2")
    b.I("v_lshlrev_b32 v1, 4, v1")
    b.I(f"s_mov_b32 s30, {rowstride}")
    b.I("v_mul_lo_u32 v245, v0, s30")
    b.I("v_add_u32 v245, v245, v1")
    b.I("s_lshr_b32 s31, s28, 1")
    b.I("s_lshl_b32 s31, s31, 14")
    b.I("s_and_b32 s32, s28, 1")
    b.I("s_lshl_b32 s32, s32, 13")
    b.I("s_add_u32 s31, s31, s32")

    def dma_chunk(c):
        for i in range(8):
            b.I(f"s_add_u32 m0, s31, {bufs[c % NB] + i * 1024}")
            b.I(f"s_add_u32 s33, s29, {(c * 64 + 4 * i) * rowstride}")
            b.vm("buffer_load_dwordx4 v245, s[8:11], s33 offen lds", tag=("w", c))

    for c in range(NB):
        dma_chunk(c)
    b.I("v_lshrrev_b32 v0, 4, v240")
    b.I("v_and_b32 v1, 15, v240")
    b.I("v_lshrrev_b32 v2, 2, v1")
    b.I("v_lshrrev_b32 v3, 1, v0")
    b.I("v_lshl_add_u32 v3, v3, 3, v2")
    b.I("v_lshlrev_b32 v3, 8, v3")
    b.I("v_and_b32 v4, 1, v0")
    b.I("v_lshl_add_u32 v3, v4, 5, v3")
    b.I("v_and_b32 v4, 3, v1")
    b.I("v_lshl_add_u32 v3, v4, 3, v3")
    b.I(f"v_add_u32 v3, {bufs[0]}, v3")
    for nb in range(4):
        b.I(f"v_xor_b32 v4, {nb}, v2")
        b.I(f"v_lshl_add_u32 v{246+nb}, v4, 6, v3")
    b.I("v_lshlrev_b32 v243, 5, v242")
    def mod_rd(s):
        base = 16 + 16 * (s % 6)
        for hf in range(2):
            b.lds(f"ds_read_b128 v[{base+4*hf}:{base+4*hf+3}], v243 offset:{modbase+1792+64*s+16*hf}", tag=("m", s))
            b.lds(f"ds_read_b128 v[{base+8+4*hf}:{base+8+4*hf+3}], v243 offset:{modbase+64*s+16*hf}", tag=("m", s))
    if prenorm:
        b.vneed(["mod"])
        b.I("s_barrier")
        if hook is not None:
            stamp(b, 5)
        for s in range(3):
            mod_rd(s)
    else:
        b.I("s_mov_b32 s36, 0x3f803f80")
        b.I("v_mov_b32 v8, s36")
        for r in range(4):
            b.I(f"v_mov_b32 v{r}, 0")
        for s in range(28):
            if s % 4 == 0:
                b.vneed([("x", min(s + 3, 27))])
            for r in range(4 * s, 4 * s + 4):
                b.I(f"v_dot2_f32_bf16 v{r&1}, v{128+r}, v8, v{r&1}")
                b.I(f"v_dot2_f32_bf16 v{2+(r&1)}, v{128+r}, v{128+r}, v{2+(r&1)}")
        b.vneed(["mod"])
        b.I("s_barrier")
        stamp(b, 5)
        b.I("v_add_f32 v0, v0, v1")
        b.I("v_add_f32 v2, v2, v3")
        b.I("v_mov_b32 v1, v0")
        b.I("v_mov_b32 v3, v2")
        for s in range(3):
            mod_rd(s)
        b.I("v_permlane32_swap_b32 v0, v1")
        b.I("v_permlane32_swap_b32 v2, v3")
        b.I("v_add_f32 v0, v0, v1")
        b.I("v_add_f32 v2, v2, v3")
        b.I(f"s_mov_b32 s36, {f32(1.0/448.0)}")
        b.I("v_mul_f32 v0, s36, v0")
        b.I("v_mul_f32 v2, s36, v2")
        b.I("v_fma_f32 v2, -v0, v0, v2")
        b.I("v_max_f32 v2, 0, v2")
        b.I("v_cvt_pk_bf16_f32 v0, 0, v0")
        b.I("v_cvt_pk_bf16_f32 v2, 0, v2")
        b.I(f"v_add_f32 v2, {f32(1e-5)}, v2")
        b.I("v_cvt_pk_bf16_f32 v2, 0, v2")
        b.I("v_sqrt_f32 v2, v2")
        b.I("s_nop 0")
        b.I("v_cvt_pk_bf16_f32 v2, 0, v2")
        b.I("v_rcp_f32 v252, v2")
        b.I("s_nop 0")
        b.I("v_mov_b32 v253, v252")
        b.I("v_mul_f32 v254, v0, v252")
        b.I("v_sub_f32 v254, 0, v254")
        b.I("v_mov_b32 v255, v254")
    def norm_ops(s):
        ops = []
        base = 16 + 16 * (s % 6)
        for q in range(4):
            t = 112 + 2 * ((4 * s + q) % 8)
            x = 128 + 4 * s + q
            ops.append(f"v_lshlrev_b32 v{t}, 16, v{x}")
            ops.append(f"v_and_b32 v{t+1}, 0xffff0000, v{x}")
            if not prenorm:
                ops.append(f"v_fma_f32 v{t}, v{t}, v252, v254")
                ops.append(f"v_fma_f32 v{t+1}, v{t+1}, v252, v254")
            ops.append(f"v_fma_f32 v{t}, v{t}, v{base+2*q}, v{base+8+2*q}")
            ops.append(f"v_fma_f32 v{t+1}, v{t+1}, v{base+2*q+1}, v{base+8+2*q+1}")
            ops.append(f"v_cvt_pk_bf16_f32 v{x}, v{t}, v{t+1}")
        return ops
    mod_rd(3)
    for s in range(4):
        b.need([("m", s)])
        for o in norm_ops(s):
            b.I(o)
    if hook is not None:
        stamp(b, 6)
    b.vneed([("w", 0)])
    b.I("s_barrier")
    D = 7
    NT = 224

    def rd(n):
        c, r = n >> 5, n & 31
        ks, blk = r >> 3, r & 7
        if r == 0 and c >= 1:
            delta = (bufs[c % NB] - bufs[(c - 1) % NB]) & 0xffffffff
            for nb in range(4):
                b.I(f"v_add_u32 v{246+nb}, {delta:#x}, v{246+nb}")
        fr = 64 + 4 * (n % 8)
        for r2 in range(2):
            off = (blk >> 2) * 16384 + (16 * ks + 4 * r2) * 256
            b.lds(f"ds_read_b64_tr_b16 a[{fr+2*r2}:{fr+2*r2+1}], v{246+(blk&3)} offset:{off}", tag=("g", n))
    for n in range(D):
        rd(n)
    q = []
    for n in range(NT):
        c, r = n >> 5, n & 31
        ks, blk = r >> 3, r & 7
        if r == 0:
            assert not q, (c, len(q))
            if c < 6:
                for s in range(4 * c + 4, 4 * c + 8):
                    q += [(o, s) for o in norm_ops(s)]
        if n % 2 == 0:
            b.need([("g", m) for m in range(n, min(n + 2, NT))])
        fr = 64 + 4 * (n % 8)
        s = c * 4 + ks
        acc = f"a[{128+16*blk}:{128+16*blk+15}]"
        cc = "0" if s == 0 else acc
        b.I(f"v_mfma_f32_32x32x16_bf16 {acc}, a[{fr}:{fr+3}], v[{128+4*s}:{131+4*s}], {cc}")
        budget = 24
        if n + D < NT:
            rd(n + D)
            budget -= 8
        if n % 2 == 1:
            budget -= 4
        if c < 6 and r in (0, 6, 12, 18):
            mod_rd(4 * c + 4 + r // 6)
            budget -= 16
        if r == 12:
            if c < 6:
                b.vneed([("w", c + 1)])
            b.I("s_barrier")
            budget = 0
            if c >= 1 and c - 1 + NB < 7:
                dma_chunk(c - 1 + NB)
            if hook is not None:
                hook(c)
        while q and budget >= 4 and r >= 3 and (q[0][1] - 4 * c - 4) * 6 + 3 <= r:
            b.need([("m", q[0][1])])
            b.I(q[0][0])
            q.pop(0)
            budget -= 4
        if r == 30:
            while q:
                b.need([("m", q[0][1])])
                b.I(q[0][0])
                q.pop(0)
    b.I("s_nop 15")


def acc_read(b, dst, src, n):
    for i in range(n):
        b.I(f"v_accvgpr_read_b32 v{dst+i}, a{src+i}")


def pack_swap(b, src, dst):
    for q in range(4):
        b.I(f"v_cvt_pk_bf16_f32 v{dst+q}, v{src+2*q}, v{src+2*q+1}")
    b.I("s_nop 1")
    b.I(f"v_permlane32_swap_b32 v{dst}, v{dst+2}")
    b.I(f"v_permlane32_swap_b32 v{dst+1}, v{dst+3}")


VM, VMC, VTHR, VL0, VL1, VTA, VTB = 184, 185, 186, 187, 188, 189, 190
VT0 = 191
VKA, VVA, VKD, VVD = 196, 204, 250, 254
SC = 46
S_KOFF, S_VOFF, S_W4096, S_CNT = 47, 48, 49, 50


EXP = os.environ.get("EXP", "").split(",")


def attn_iter(b, u, first=False, do_dma=True):
    D = 8
    Scur = 128 + 16 * (u & 1)
    Snxt = 128 + 16 * ((u + 1) & 1)
    T = 168
    P = 160

    def read_for(i):
        if "nolds" in EXP:
            b.tags[("k", i % 16)] = 0
            b.tags[("v", i % 16)] = 0
            return
        if i < 16:
            slot, s = (u + 1) & 3, i
        elif i >= 32:
            slot, s = (u + 2) & 3, i - 32
        if i < 16 or i >= 32:
            fr = 64 + 4 * (s % 8)
            b.lds(f"ds_read_b128 a[{fr}:{fr+3}], v{VKA+(s&7)} offset:{slot*16384+(s>>3)*256}", tag=("k", s))
        else:
            idx = i - 16
            ks, db = idx >> 3, idx & 7
            fr = 96 + 4 * (idx % 8)
            for r2 in range(2):
                off = u * 16384 + (16 * ks + 8 * r2) * 512 + (db >> 2) * 256
                b.lds(f"ds_read_b64_tr_b16 a[{fr+2*r2}:{fr+2*r2+1}], v{VVA+(db&3)} offset:{off}", tag=("v", idx))

    ex = []
    F = lambda e: (f"v_fma_f32 v{T+e}, v{Scur+e}, s{SC}, -v{VMC}", 4)
    X = lambda e: (f"v_exp_f32 v{T+e}, v{T+e}", 8)
    A = lambda e: (f"v_add_f32 v{VL0+(e&1)}, v{VL0+(e&1)}, v{T+e}", 4)
    C = lambda p: (f"v_cvt_pk_bf16_f32 v{P+p}, v{T+2*p}, v{T+2*p+1}", 4)
    ex += [F(0), F(1), X(0), X(1)]
    for p in range(8):
        e = 2 * p
        if p < 7:
            ex += [F(e + 2), F(e + 3), X(e + 2), A(e), X(e + 3), A(e + 1), C(p)]
        else:
            ex += [A(e), A(e + 1), C(p)]
    mx = [
        (f"v_max3_f32 v{VT0}, v{Snxt}, v{Snxt+1}, v{Snxt+2}", 4),
        (f"v_max3_f32 v{VT0+1}, v{Snxt+3}, v{Snxt+4}, v{Snxt+5}", 4),
        (f"v_max3_f32 v{VT0+2}, v{Snxt+6}, v{Snxt+7}, v{Snxt+8}", 4),
        (f"v_max3_f32 v{VT0+3}, v{Snxt+9}, v{Snxt+10}, v{Snxt+11}", 4),
        (f"v_max3_f32 v{VT0+4}, v{Snxt+12}, v{Snxt+13}, v{Snxt+14}", 4),
        (f"v_max3_f32 v{VT0}, v{VT0}, v{VT0+1}, v{VT0+2}", 4),
        (f"v_max3_f32 v{VT0+3}, v{VT0+3}, v{VT0+4}, v{Snxt+15}", 4),
        (f"v_max_f32 v{VTA}, v{VT0}, v{VT0+3}", 4),
        (f"v_max_f32 v{VTB}, v{VT0}, v{VT0+3}", 4),
        None,
        (f"v_permlane32_swap_b32 v{VTA}, v{VTB}", 4),
        (f"v_max_f32 v{VTA}, v{VTA}, v{VTB}", 4),
        (f"v_cmp_gt_f32 vcc, v{VTA}, v{VTHR}", 4),
    ]
    BAR = 32 - D - 1
    dma = []
    if "nosm" in EXP:
        ex = []
        mx = mx[-1:]
    if do_dma and "nodma" not in EXP:
        for j in range(8):
            uu = u if j < 2 else (u - 1) & 3
            l = []
            if j < 4:
                if j == 0:
                    l.append(f"s_add_u32 m0, s{S_W4096}, {uu*16384}")
                    if "samekv" not in EXP:
                        l.append(f"s_add_u32 s{S_KOFF}, s{S_KOFF}, 16384")
                        l.append(f"s_and_b32 s{S_KOFF}, s{S_KOFF}, 0xfffff")
                l.append(f"buffer_load_dwordx4 v{VKD+j}, s[12:15], s{S_KOFF} offen offset:{j*1024} lds")
            else:
                if j == 4:
                    l.append(f"s_add_u32 m0, s{S_W4096}, {65536+((uu+3)&3)*16384}")
                    if "samekv" not in EXP:
                        l.append(f"s_add_u32 s{S_VOFF}, s{S_VOFF}, 16384")
                        l.append(f"s_and_b32 s{S_VOFF}, s{S_VOFF}, 0xfffff")
                l.append(f"buffer_load_dwordx4 v{VVD+(j&1)}, s[16:19], s{S_VOFF} offen offset:{(j-4)*1024} lds")
            dma.append(l)

    exi = 0
    mxi = 0
    dmi = 0
    for i in range(32):
        if i % 4 == 0:
            if i < 16:
                b.need([("k", s) for s in range(i, i + 4)])
            else:
                b.need([("v", s) for s in range(i - 16, i - 12)])
        if i < 16:
            fr = 64 + 4 * (i % 8)
            cc = "0" if i == 0 else f"v[{Snxt}:{Snxt+15}]"
            b.I(f"v_mfma_f32_32x32x16_bf16 v[{Snxt}:{Snxt+15}], a[{fr}:{fr+3}], a[{4*i}:{4*i+3}], {cc}")
        else:
            idx = i - 16
            ks, db = idx >> 3, idx & 7
            fr = 96 + 4 * (idx % 8)
            b.I(f"v_mfma_f32_32x32x16_bf16 v[{16*db}:{16*db+15}], a[{fr}:{fr+3}], v[{P+4*ks}:{P+4*ks+3}], v[{16*db}:{16*db+15}]")
        budget = 24
        if i == BAR:
            b.I("s_waitcnt vmcnt(8)")
            if "nobar" not in EXP:
                b.I("s_barrier")
            budget -= 8
        read_for(i + D)
        budget -= 4 if (i + D < 16 or i + D >= 32) else 8
        if (i + 1) % 4 == 0:
            budget -= 4
        if dma and ((i - BAR - 1) % 32) % 4 == 0:
            j = ((i - BAR - 1) % 32) // 4
            for t in dma[j]:
                b.I(t)
                budget -= 4
            budget -= 0
        while exi < len(ex) and budget >= ex[exi][1]:
            if ex[exi][0].startswith("v_cvt_pk"):
                pp = int(ex[exi][0].split()[1][1:-1]) - P
                assert i < (15 if pp < 4 else 23), ("deadline", pp, i)
            b.I(ex[exi][0])
            budget -= ex[exi][1]
            exi += 1
        if exi == len(ex) and i >= 19:
            while mxi < len(mx) and budget >= 4:
                if mx[mxi] is None:
                    mxi += 1
                    break
                b.I(mx[mxi][0])
                budget -= 4
                mxi += 1
    assert exi == len(ex) and mxi == len(mx), (exi, mxi)


def gen_attn():
    b = Builder()
    name = "attn_kernel"
    kernel_head(b, name)
    b.I("s_cmp_ge_u32 s2, 256")
    b.I("s_cbranch_scc1 ATT_END")
    stamp(b, 0)
    b.I("s_load_dwordx8 s[36:43], s[0:1], 0")
    b.I("s_load_dwordx2 s[44:45], s[0:1], 104")
    b.I("v_and_b32 v240, 63, v0")
    b.I("v_lshrrev_b32 v1, 6, v0")
    b.I("v_and_b32 v241, 31, v240")
    b.I("v_readfirstlane_b32 s28, v1")
    b.I("v_lshrrev_b32 v242, 5, v240")
    b.I("s_and_b32 s51, s2, 7")
    b.I("s_lshr_b32 s52, s2, 3")
    b.I("s_and_b32 s53, s52, 1")
    b.I("s_lshr_b32 s54, s52, 1")
    b.I("s_lshl_b32 s55, s51, 1")
    b.I("s_add_u32 s55, s55, s53")
    b.I("s_lshl_b32 s56, s54, 2")
    b.I("s_add_u32 s56, s56, s28")
    b.I("v_lshlrev_b32 v244, 4, v240")
    b.I("s_lshl_b32 s29, s55, 9")
    b.I("s_lshr_b32 s30, s28, 1")
    b.I("s_lshl_b32 s30, s30, 8")
    b.I("s_add_u32 s29, s29, s30")
    b.I("s_and_b32 s30, s28, 1")
    b.I("s_lshl_b32 s30, s30, 18")
    b.I("s_add_u32 s29, s29, s30")
    b.I("s_waitcnt lgkmcnt(0)")
    srd(b, 4, 44, SZ_X, WS_N1)
    srd(b, 8, 42, 448 * 4096 * 2)
    b.I("s_lshl_b32 s30, s51, 20")
    for d, lo in ((12, 38), (16, 40)):
        b.I(f"s_add_u32 s{d}, s{lo}, s30")
        b.I(f"s_addc_u32 s{d+1}, s{lo+1}, 0")
        b.I(f"s_mov_b32 s{d+2}, 0x100000")
        b.I(f"s_mov_b32 s{d+3}, 0x00020000")
    srd(b, 20, 44, SZ_MOD, WS_MOD)
    srd(b, 24, 44, SZ_O, WS_O)
    b.I(f"s_lshl_b32 s{S_W4096}, s28, 12")
    b.I(f"s_lshl_b32 s{S_KOFF}, s52, 15")
    b.I(f"s_lshl_b32 s{S_VOFF}, s52, 15")
    b.I(f"s_mov_b32 s{SC}, {f32(CSCALE)}")

    def kv_tile(isv, slot, pieces, adv):
        so = S_VOFF if isv else S_KOFF
        b.I(f"s_add_u32 m0, s{S_W4096}, {(65536 if isv else 0)+slot*16384}")
        b.I("s_nop 0")
        for i in range(pieces):
            if isv:
                b.vm(f"buffer_load_dwordx4 v{VVD+(i&1)}, s[16:19], s{so} offen offset:{i*1024} lds")
            else:
                b.vm(f"buffer_load_dwordx4 v{VKD+i}, s[12:15], s{so} offen offset:{i*1024} lds")
        if adv:
            b.I(f"s_add_u32 s{so}, s{so}, 16384")
            b.I(f"s_and_b32 s{so}, s{so}, 0xfffff")

    def hook(c):
        if c == 0:
            b.I("v_lshlrev_b32 v0, 3, s28")
            b.I("v_add_u32 v0, v0, v242")
            for i in range(4):
                b.I(f"v_add_u32 v1, {2*i}, v0")
                b.I("v_and_b32 v1, 15, v1")
                b.I("v_xor_b32 v1, v1, v241")
                b.I(f"v_lshlrev_b32 v{VKD+i}, 4, v1")
                b.I(f"v_lshl_add_u32 v{VKD+i}, v0, 9, v{VKD+i}")
            for i in range(2):
                b.I(f"v_add_u32 v1, {2*i}, v242")
                b.I("v_lshlrev_b32 v1, 2, v1")
                b.I("v_xor_b32 v1, v1, v241")
                b.I(f"v_lshlrev_b32 v{VVD+i}, 4, v1")
                b.I(f"v_lshl_add_u32 v{VVD+i}, v0, 9, v{VVD+i}")
            kv_tile(False, 0, 4, True)
            b.I(f"s_mov_b32 s57, s{S_KOFF}")
            b.I(f"s_add_u32 s{S_KOFF}, s{S_KOFF}, 16384")
            b.I(f"s_and_b32 s{S_KOFF}, s{S_KOFF}, 0xfffff")
        if c == 4:
            kv_tile(True, 0, 4, True)
            kv_tile(True, 1, 4, False)
        if c == 5:
            kv_tile(False, 2, 4, True)
        if c == 6:
            b.I(f"s_add_u32 m0, s{S_W4096}, 16384")
            b.I("s_nop 0")
            for i in range(4):
                b.vm(f"buffer_load_dwordx4 v{VKD+i}, s[12:15], s57 offen offset:{i*1024} lds")
            kv_tile(False, 3, 2, False)

    ln_gemm(b, 8192, 0, [32768, 98304, 131072, 65536], 16384, hook, prenorm=True)
    stamp(b, 1)

    for blk in range(8):
        for hf in range(2):
            d = 128 + 4 * ((2 * blk + hf) % 4)
            acc_read(b, 16 * blk + 8 * hf, 128 + 16 * blk + 8 * hf, 8)
            pack_swap(b, 16 * blk + 8 * hf, d)
            for q in range(4):
                b.I(f"v_accvgpr_write_b32 a{4*(2*blk+hf)+q}, v{d+q}")
    b.I("v_and_b32 v0, 15, v241")
    b.I("v_xor_b32 v0, v0, v242")
    b.I("v_lshlrev_b32 v1, 9, v241")
    for s in range(8):
        b.I(f"v_xor_b32 v2, {2*s}, v0")
        b.I(f"v_lshl_add_u32 v{VKA+s}, v2, 4, v1")
    b.I("v_lshrrev_b32 v0, 4, v240")
    b.I("v_and_b32 v1, 15, v240")
    b.I("v_lshrrev_b32 v2, 2, v1")
    b.I("v_lshrrev_b32 v3, 1, v0")
    b.I("v_lshl_add_u32 v3, v3, 2, v2")
    b.I("v_lshlrev_b32 v3, 9, v3")
    b.I("v_and_b32 v4, 1, v0")
    b.I("v_lshl_add_u32 v3, v4, 5, v3")
    b.I("v_and_b32 v4, 3, v1")
    b.I("v_lshl_add_u32 v3, v4, 3, v3")
    b.I("v_add_u32 v3, 0x10000, v3")
    for db in range(4):
        b.I(f"v_xor_b32 v4, {db}, v2")
        b.I(f"v_lshl_add_u32 v{VVA+db}, v4, 6, v3")
    for r in range(128):
        b.I(f"v_mov_b32 v{r}, 0")
    b.I(f"v_mov_b32 v{VL0}, 0")
    b.I(f"v_mov_b32 v{VL1}, 0")
    b.I("s_waitcnt vmcnt(0)")
    b.I("s_barrier")
    for s in range(16):
        fr = 64 + 4 * (s % 8)
        if s == 8:
            b.lds_drain()
        b.lds(f"ds_read_b128 a[{fr}:{fr+3}], v{VKA+(s&7)} offset:{(s>>3)*256}", tag=("k0", s))
        if s % 8 == 7:
            b.lds_drain()
            for s2 in range(s - 7, s + 1):
                fr2 = 64 + 4 * (s2 % 8)
                cc = "0" if s2 == 0 else "v[128:143]"
                b.I(f"v_mfma_f32_32x32x16_bf16 v[128:143], a[{fr2}:{fr2+3}], a[{4*s2}:{4*s2+3}], {cc}")
    b.I("s_nop 15")
    b.I(f"v_max3_f32 v{VT0}, v128, v129, v130")
    for r in range(3, 15, 2):
        b.I(f"v_max3_f32 v{VT0}, v{VT0}, v{128+r}, v{129+r}")
    b.I(f"v_max_f32 v{VTA}, v{VT0}, v143")
    b.I(f"v_mov_b32 v{VTB}, v{VTA}")
    b.I("s_nop 1")
    b.I(f"v_permlane32_swap_b32 v{VTA}, v{VTB}")
    b.I(f"v_max_f32 v{VM}, v{VTA}, v{VTB}")
    b.I(f"v_mul_f32 v{VMC}, s{SC}, v{VM}")
    b.I(f"v_add_f32 v{VTHR}, {f32(TLAZY/CSCALE)}, v{VM}")
    for s in range(8):
        fr = 64 + 4 * s
        b.lds(f"ds_read_b128 a[{fr}:{fr+3}], v{VKA+s} offset:{16384}", tag=("k", s))
    b.I(f"s_mov_b32 s{S_CNT}, 0")
    stamp(b, 2)
    b.raw(".p2align 6")
    b.L("ATT_LOOP")
    start = len(b.items)
    for u in range(4):
        attn_iter(b, u)
        if u == 3:
            b.I(f"s_add_u32 s{S_CNT}, s{S_CNT}, 1")
            b.I(f"s_cmp_eq_u32 s{S_CNT}, 16")
            b.I("s_cbranch_scc1 ATT_EPI")
        b.I(f"s_cbranch_vccnz ATT_RS{u}")
        b.L(f"ATT_BK{u}")
    b.I("s_branch ATT_LOOP")
    for u in range(4):
        b.L(f"ATT_RS{u}")
        b.I("s_nop 15")
        b.I(f"v_max_f32 v{VTA}, v{VTA}, v{VM}")
        b.I(f"v_sub_f32 v{VTB}, v{VM}, v{VTA}")
        b.I(f"v_mul_f32 v{VTB}, s{SC}, v{VTB}")
        b.I(f"v_exp_f32 v{VTB}, v{VTB}")
        b.I(f"v_mov_b32 v{VM}, v{VTA}")
        b.I(f"v_mul_f32 v{VMC}, s{SC}, v{VM}")
        b.I(f"v_add_f32 v{VTHR}, {f32(TLAZY/CSCALE)}, v{VM}")
        b.I(f"v_mul_f32 v{VL0}, v{VL0}, v{VTB}")
        b.I(f"v_mul_f32 v{VL1}, v{VL1}, v{VTB}")
        for r in range(128):
            b.I(f"v_mul_f32 v{r}, v{r}, v{VTB}")
        b.I(f"s_branch ATT_BK{u}")
    b.L("ATT_EPI")
    stamp(b, 3)
    b.I("s_nop 15")
    b.I(f"v_add_f32 v{VL0}, v{VL0}, v{VL1}")
    b.I(f"v_mov_b32 v{VL1}, v{VL0}")
    b.I("s_nop 1")
    b.I(f"v_permlane32_swap_b32 v{VL0}, v{VL1}")
    b.I(f"v_add_f32 v{VL0}, v{VL0}, v{VL1}")
    b.I(f"v_rcp_f32 v{VL0}, v{VL0}")
    b.I("v_lshlrev_b32 v239, 4, v240")
    b.I("s_lshl_b32 s58, s56, 18")
    b.I("s_lshl_b32 s59, s55, 14")
    b.I("s_add_u32 s58, s58, s59")
    for blk in range(8):
        for hf in range(2):
            f = 2 * blk + hf
            src = 16 * blk + 8 * hf
            for r in range(8):
                b.I(f"v_mul_f32 v{src+r}, v{src+r}, v{VL0}")
            d = 128 + 4 * (f % 8)
            pack_swap(b, src, d)
            if f % 4 == 0 and f:
                b.I("s_add_u32 s58, s58, 4096")
            b.I(f"buffer_store_dwordx4 v[{d}:{d+3}], v239, s[24:27], s58 offen offset:{(f%4)*1024}")
    b.I("s_waitcnt vmcnt(0) lgkmcnt(0)")
    stamp(b, 4)
    stamp_flush(b, 7)
    b.L("ATT_END")
    b.I("s_endpgm")
    b.check(name)
    return b.text() + kernel_desc(name, 512, 256)


def gen_ffn_up():
    b = Builder()
    name = "ffnup_kernel"
    kernel_head(b, name)
    b.I("s_cmp_ge_u32 s2, 224")
    b.I("s_cbranch_scc1 UP_END")
    stamp(b, 0)
    b.I("s_load_dwordx4 s[36:39], s[0:1], 48")
    b.I("s_load_dwordx2 s[44:45], s[0:1], 104")
    b.I("v_and_b32 v240, 63, v0")
    b.I("v_lshrrev_b32 v1, 6, v0")
    b.I("v_and_b32 v241, 31, v240")
    b.I("v_readfirstlane_b32 s28, v1")
    b.I("v_lshrrev_b32 v242, 5, v240")
    b.I("s_and_b32 s51, s2, 7")
    b.I("s_lshr_b32 s52, s2, 3")
    b.I("s_cmp_ge_u32 s52, 14")
    b.I("s_cselect_b32 s53, 8, 0")
    b.I("s_cselect_b32 s54, 14, 0")
    b.I("s_add_u32 s53, s53, s51")
    b.I("s_sub_u32 s54, s52, s54")
    b.I("s_lshl_b32 s56, s53, 2")
    b.I("s_add_u32 s56, s56, s28")
    b.I("v_lshlrev_b32 v244, 4, v240")
    b.I("s_lshl_b32 s29, s54, 8")
    b.I("s_and_b32 s30, s28, 1")
    b.I("s_mul_i32 s30, s30, 114688")
    b.I("s_add_u32 s29, s29, s30")
    b.I("s_waitcnt lgkmcnt(0)")
    srd(b, 4, 44, SZ_X, WS_X1)
    b.I("s_cmp_ge_u32 s28, 2")
    b.I("s_cselect_b32 s8, s38, s36")
    b.I("s_cselect_b32 s9, s39, s37")
    b.I(f"s_mov_b32 s10, {448*1792*2}")
    b.I("s_mov_b32 s11, 0x00020000")
    srd(b, 20, 44, SZ_MOD, WS_MOD)
    srd(b, 24, 44, SZ_ACT, WS_ACT)
    ln_gemm(b, 3584, 3, [32768, 65536, 98304, 131072], 0, hook=lambda c: None)
    stamp(b, 1)
    b.I(f"s_mov_b32 s40, {f32(-LOG2E)}")
    b.I("v_lshlrev_b32 v239, 4, v240")
    b.I("s_mul_i32 s58, s56, 114688")
    b.I("s_lshl_b32 s59, s54, 13")
    b.I("s_add_u32 s58, s58, s59")
    for blk in range(4):
        for hf in range(2):
            f = 2 * blk + hf
            g0 = 16 * blk + 8 * hf
            u0 = 64 + g0
            t0 = 128 + 8 * (f % 2)
            acc_read(b, g0, 128 + g0, 8)
            acc_read(b, u0, 128 + u0, 8)
            for r in range(8):
                b.I(f"v_cvt_pk_bf16_f32 v{g0+r}, 0, v{g0+r}")
            for r in range(8):
                b.I(f"v_mul_f32 v{t0+r}, s40, v{g0+r}")
            for r in range(8):
                b.I(f"v_exp_f32 v{t0+r}, v{t0+r}")
            for r in range(8):
                b.I(f"v_cvt_pk_bf16_f32 v{u0+r}, 0, v{u0+r}")
            for r in range(8):
                b.I(f"v_add_f32 v{t0+r}, 1.0, v{t0+r}")
            for r in range(8):
                b.I(f"v_rcp_f32 v{t0+r}, v{t0+r}")
            b.I("s_nop 0")
            for r in range(8):
                b.I(f"v_mul_f32 v{t0+r}, v{g0+r}, v{t0+r}")
            for r in range(8):
                b.I(f"v_cvt_pk_bf16_f32 v{t0+r}, 0, v{t0+r}")
            for r in range(8):
                b.I(f"v_mul_f32 v{t0+r}, v{t0+r}, v{u0+r}")
            d = 160 + 4 * (f % 8)
            pack_swap(b, t0, d)
            if f % 4 == 0 and f:
                b.I("s_add_u32 s58, s58, 4096")
            b.I(f"buffer_store_dwordx4 v[{d}:{d+3}], v239, s[24:27], s58 offen offset:{(f%4)*1024}")
    b.I("s_waitcnt vmcnt(0)")
    stamp(b, 2)
    stamp(b, 3)
    stamp(b, 4)
    stamp_flush(b, 7)
    b.L("UP_END")
    b.I("s_endpgm")
    b.check(name)
    return b.text() + kernel_desc(name, 512, 256)


def gen_splitk(name, K, a_off, a_size, w_arg, xin_from_ws, seg_gate, out_to_ws):
    b = Builder()
    kernel_head(b, name)
    END = name.upper() + "_END"
    nst = K // 32 // 4
    KS = K // 16
    NR = 4
    b.I("s_cmp_ge_u32 s2, 224")
    b.I(f"s_cbranch_scc1 {END}")
    stamp(b, 0)
    b.I(f"s_load_dwordx2 s[36:37], s[0:1], {w_arg}")
    b.I("s_load_dwordx2 s[38:39], s[0:1], 0")
    b.I("s_load_dwordx2 s[40:41], s[0:1], 88")
    b.I("s_load_dwordx2 s[44:45], s[0:1], 104")
    b.I("v_and_b32 v160, 63, v0")
    b.I("v_lshrrev_b32 v1, 6, v0")
    b.I("v_and_b32 v161, 31, v160")
    b.I("v_readfirstlane_b32 s28, v1")
    b.I("v_lshrrev_b32 v162, 5, v160")
    b.I("s_and_b32 s51, s2, 7")
    b.I("s_lshr_b32 s52, s2, 3")
    b.I("s_mul_i32 s53, s52, 37")
    b.I("s_lshr_b32 s53, s53, 8")
    b.I("s_mul_i32 s54, s53, 7")
    b.I("s_sub_u32 s54, s52, s54")
    b.I("s_lshl_b32 s53, s53, 3")
    b.I("s_add_u32 s53, s53, s51")
    b.I("v_lshlrev_b32 v163, 4, v160")
    b.I(f"v_add_u32 v164, {KS*1024}, v163")
    b.I(f"s_mul_i32 s29, s53, {2*KS*1024}")
    b.I("s_lshl_b32 s30, s28, 11")
    b.I("s_add_u32 s29, s29, s30")
    b.I("v_lshrrev_b32 v0, 3, v160")
    b.I("v_and_b32 v1, 7, v160")
    b.I("v_bfe_u32 v2, v160, 4, 1")
    b.I("v_lshlrev_b32 v2, 2, v2")
    b.I("v_xor_b32 v1, v1, v2")
    b.I("v_lshlrev_b32 v1, 4, v1")
    b.I("v_mul_u32_u24 v165, 896, v0")
    b.I("v_add_u32 v165, v165, v1")
    b.I("s_lshl_b32 s30, s54, 7")
    b.I("s_mul_i32 s31, s28, 28672")
    b.I("s_add_u32 s30, s30, s31")
    b.I(f"s_mul_i32 s31, s28, {NR*4096}")
    b.I("v_lshrrev_b32 v0, 4, v160")
    b.I("v_and_b32 v1, 15, v160")
    b.I("v_lshrrev_b32 v2, 2, v1")
    b.I("v_lshrrev_b32 v3, 1, v0")
    b.I("v_lshl_add_u32 v3, v3, 3, v2")
    b.I("v_lshlrev_b32 v3, 7, v3")
    b.I("v_and_b32 v4, 1, v0")
    b.I("v_lshl_add_u32 v3, v4, 5, v3")
    b.I("v_and_b32 v4, 3, v1")
    b.I("v_lshl_add_u32 v3, v4, 3, v3")
    b.I("v_add_u32 v3, s31, v3")
    b.I("v_lshrrev_b32 v2, 3, v1")
    for nb in range(2):
        b.I(f"v_xor_b32 v4, {nb}, v2")
        b.I(f"v_lshl_add_u32 v{166+nb}, v4, 6, v3")
    b.I("s_waitcnt lgkmcnt(0)")
    srd(b, 4, 44, a_size, a_off)
    srd(b, 8, 36, K * 448 * 2)
    if xin_from_ws:
        srd(b, 12, 44, SZ_X, WS_X1)
    else:
        srd(b, 12, 38, SZ_X)
    if out_to_ws:
        srd(b, 16, 44, SZ_X, WS_X1)
    else:
        srd(b, 16, 40, SZ_X)
    srd(b, 20, 44, SZ_MOD, WS_MOD)

    def issue(st):
        p = st % NR
        b.I(f"s_add_u32 s33, s29, {st*8192}")
        for ks in range(2):
            for rb in range(2):
                r = 64 + 16 * p + 4 * (2 * ks + rb)
                b.I(f"buffer_load_dwordx4 v[{r}:{r+3}], v{163+rb}, s[4:7], s33 offen offset:{ks*1024}")
        for i in range(4):
            b.I(f"s_add_u32 m0, s31, {p*4096+i*1024}")
            b.I(f"s_add_u32 s34, s30, {(st*128+8*i)*896}")
            b.I("buffer_load_dwordx4 v165, s[8:11], s34 offen lds")

    for st in range(min(NR, nst)):
        issue(st)
    for st in range(nst):
        p = st % NR
        after = min(NR - 1, nst - 1 - st)
        b.I(f"s_waitcnt vmcnt({8*after})")
        if st == 0:
            stamp(b, 1)
        for ks in range(2):
            for nb in range(2):
                fr = 128 + 4 * (2 * ks + nb)
                for r2 in range(2):
                    b.lds(f"ds_read_b64_tr_b16 v[{fr+2*r2}:{fr+2*r2+1}], v{166+nb} offset:{p*4096+(16*ks+4*r2)*128}",
                          tag=("w", ks, nb))
        for ks in range(2):
            for nb in range(2):
                b.need([("w", ks, nb)])
                fr = 128 + 4 * (2 * ks + nb)
                for rb in range(2):
                    a = 16 * (2 * nb + rb)
                    r = 64 + 16 * p + 4 * (2 * ks + rb)
                    cc = "0" if (st == 0 and ks == 0) else f"v[{a}:{a+15}]"
                    b.I(f"v_mfma_f32_32x32x16_bf16 v[{a}:{a+15}], v[{fr}:{fr+3}], v[{r}:{r+3}], {cc}")
        if st + NR < nst:
            issue(st + NR)
    b.I("s_nop 15")
    stamp(b, 2)
    b.I("s_barrier")
    stamp(b, 3)
    b.I("s_lshr_b32 s55, s28, 1")
    b.I("s_and_b32 s56, s28, 1")
    b.I("s_lshl_b32 s57, s53, 6")
    b.I("s_lshl_b32 s58, s56, 5")
    b.I("s_add_u32 s57, s57, s58")
    b.I("v_add_u32 v168, s57, v161")
    b.I("v_mul_u32_u24 v168, 896, v168")
    b.I("v_lshl_add_u32 v168, v162, 3, v168")
    b.I("s_lshl_b32 s58, s54, 7")
    b.I("s_lshl_b32 s59, s55, 6")
    b.I("s_add_u32 s58, s58, s59")
    b.I("s_lshr_b32 s61, s57, 5")
    b.I("s_mul_i32 s61, s61, 28")
    b.I("s_lshl_b32 s62, s54, 2")
    b.I("s_add_u32 s61, s61, s62")
    b.I("s_lshl_b32 s62, s55, 1")
    b.I("s_add_u32 s61, s61, s62")
    b.I("s_lshl_b32 s61, s61, 10")
    if xin_from_ws:
        b.I("v_lshlrev_b32 v171, 4, v161")
        b.I("v_lshl_add_u32 v171, v162, 3, v171")
        for q in range(4):
            b.I(f"buffer_load_dwordx2 v[{128+2*q}:{129+2*q}], v171, s[12:15], s61 offen offset:{(q>>1)*1024+(q&1)*512}")
    else:
        for q in range(4):
            b.I(f"buffer_load_dwordx2 v[{128+2*q}:{129+2*q}], v168, s[12:15], s58 offen offset:{16*q}")
    b.I("v_lshlrev_b32 v169, 4, v162")
    b.I("s_lshl_b32 s59, s58, 1")
    b.I(f"s_add_u32 s59, s59, {seg_gate*1792}")
    for q in range(4):
        b.I(f"buffer_load_dwordx4 v[{136+4*q}:{139+4*q}], v169, s[20:23], s59 offen offset:{32*q}")
    for t in range(4):
        b.I(f"s_sub_u32 s60, s28, {t+1}")
        b.I("s_and_b32 s60, s60, 3")
        b.I("s_cmp_eq_u32 s60, 3")
        b.I(f"s_cbranch_scc1 {name.upper()}_SK{t}")
        b.I("s_lshl_b32 s60, s60, 12")
        b.I(f"s_add_u32 s60, s60, {t*12288}")
        b.I("v_add_u32 v170, s60, v163")
        for q in range(4):
            b.I(f"ds_write_b128 v170, v[{16*t+4*q}:{16*t+4*q+3}] offset:{1024*q}")
        b.L(f"{name.upper()}_SK{t}")
    b.I("s_waitcnt lgkmcnt(0)")
    b.I("s_barrier")
    b.I("s_mul_i32 s60, s28, 12288")
    b.I("v_add_u32 v170, s60, v163")
    for sl in range(3):
        for q in range(4):
            b.I(f"ds_read_b128 v[{64+16*sl+4*q}:{64+16*sl+4*q+3}], v170 offset:{4096*sl+1024*q}")
    for t in range(4):
        b.I(f"s_cmp_lg_u32 s28, {t}")
        b.I(f"s_cbranch_scc1 {name.upper()}_MV{t}")
        for r in range(16):
            b.I(f"v_mov_b32 v{112+r}, v{16*t+r}")
        b.L(f"{name.upper()}_MV{t}")
    b.I("s_waitcnt lgkmcnt(0)")
    for sl in range(3):
        for r in range(16):
            b.I(f"v_add_f32 v{112+r}, v{112+r}, v{64+16*sl+r}")
    b.I("s_waitcnt vmcnt(0)")
    for q in range(4):
        for e in range(4):
            r = 112 + 4 * q + e
            b.I(f"v_cvt_pk_bf16_f32 v{r}, 0, v{r}")
            b.I(f"v_mul_f32 v{r}, v{r}, v{136+4*q+e}")
            b.I(f"v_cvt_pk_bf16_f32 v{r}, 0, v{r}")
            xs = 128 + 2 * q + (e >> 1)
            if e & 1:
                b.I(f"v_and_b32 v152, 0xffff0000, v{xs}")
            else:
                b.I(f"v_lshlrev_b32 v152, 16, v{xs}")
            b.I(f"v_add_f32 v{r}, v{r}, v152")
        if out_to_ws:
            if q & 1:
                d = 64 + 4 * (q >> 1)
                pack_swap(b, 112 + 8 * (q >> 1), d)
                b.I(f"buffer_store_dwordx4 v[{d}:{d+3}], v163, s[16:19], s61 offen offset:{(q>>1)*1024}")
        else:
            b.I(f"v_cvt_pk_bf16_f32 v{154+2*q}, v{112+4*q}, v{113+4*q}")
            b.I(f"v_cvt_pk_bf16_f32 v{155+2*q}, v{114+4*q}, v{115+4*q}")
            b.I(f"buffer_store_dwordx2 v[{154+2*q}:{155+2*q}], v168, s[16:19], s58 offen offset:{16*q}")
    b.I("s_waitcnt vmcnt(0)")
    stamp(b, 4)
    stamp_flush(b, 5)
    b.L(END)
    b.I("s_endpgm")
    b.check(name)
    return b.text() + kernel_desc(name, 176, 176)


HEADER = """; adaLN + GQA attention (cached K/V) + SwiGLU FFN block, gfx950.  Generated by gen/gen.py (own generator).
; @launch kernel=mod_kernel grid=(148,1,1) block=(256,1,1) lds=9216
; @launch kernel=attn_kernel grid=(256,1,1) block=(256,1,1) lds=163840
; @launch kernel=oproj_kernel grid=(224,1,1) block=(256,1,1) lds=65536
; @launch kernel=ffnup_kernel grid=(224,1,1) block=(256,1,1) lds=163840
; @launch kernel=ffndown_kernel grid=(224,1,1) block=(256,1,1) lds=65536
.amdgcn_target "amdgcn-amd-amdhsa--gfx950"
"""


def main():
    out = HEADER
    out += gen_mod()
    out += gen_attn()
    out += gen_splitk("oproj_kernel", 4096, WS_O, SZ_O, 32, False, 2, True)
    out += gen_ffn_up()
    out += gen_splitk("ffndown_kernel", 1792, WS_ACT, SZ_ACT, 64, True, 5, False)
    path = sys.argv[1] if len(sys.argv) > 1 else "adaLN_cond__gqa_block_cached__swiglu_ffn__prompt.s"
    open(path, "w").write(out)
    print("wrote", path, len(out))


if __name__ == "__main__":
    main()
```
